```python
import torch

def _softmax(x, axis=-1):
    return torch.softmax(x, dim=axis)
def _gelu(x):
    return torch.nn.functional.gelu(x, approximate="tanh")
def _silu(x):
    return torch.nn.functional.silu(x)
def _sigmoid(x):
    return torch.sigmoid(x)
def _layernorm(x, axis=-1, eps=1e-5):
    m = x.mean(dim=axis, keepdim=True)
    v = x.var(dim=axis, keepdim=True, unbiased=False)
    return (x - m) / torch.sqrt(v + eps)
def _scatter_add(tgt, idx, src, axis=0):
    return tgt.clone().index_add_(axis, idx, src)
def _segment_sum(src, seg, n):
    out = torch.zeros((n,) + src.shape[1:], dtype=src.dtype)
    return out.index_add_(0, seg, src)
def _pad(x, pw):
    flat = tuple(v for pair in reversed(pw) for v in pair)
    return torch.nn.functional.pad(x, flat)

kernel_name = 'recurrent_scan__softmax_full_mha__mixer_channel_mlp__prompt'

def setup_inputs():

    _w = (lambda a: (lambda t: t.to(torch.bfloat16) if t.is_floating_point() else t)(torch.as_tensor(a)))
    def _A_setup():
        B, S, D = 1, 2048, 640
        return {
            "x": _w((lambda *s: torch.randn(*s, dtype=torch.bfloat16) * 0.05)(B, S, D)),
            "wqkv": _w((lambda *s: torch.randn(*s, dtype=torch.bfloat16) * 0.05)(D, 3 * D)),
            "wo": _w((lambda *s: torch.randn(*s, dtype=torch.bfloat16) * 0.05)(D, D)),
        }
    _A_in = _A_setup()

    def _B_setup():
        B, S, D, F = 1, 2048, 640, 1536
        return {
            "x": _w((lambda *s: torch.randn(*s, dtype=torch.bfloat16) * 0.05)(B, S, D)),
            "w1": _w((lambda *s: torch.randn(*s, dtype=torch.bfloat16) * 1.6)(D, F) * (D ** -0.5)),
            "b1": _w((lambda *s: torch.randn(*s, dtype=torch.bfloat16) * 0.8)(F)),
            "w2": _w((lambda *s: torch.randn(*s, dtype=torch.bfloat16) * 0.05)(F, D) * (F ** -0.5)),
            "b2": _w((lambda *s: torch.randn(*s, dtype=torch.bfloat16) * 0.05)(D)),
        }
    _B_in = _B_setup()

    return {
        "A_x": _A_in["x"],
        "A_wqkv": _A_in["wqkv"],
        "A_wo": _A_in["wo"],
        "B_x": _B_in["x"],
        "B_w1": _B_in["w1"],
        "B_b1": _B_in["b1"],
        "B_w2": _B_in["w2"],
        "B_b2": _B_in["b2"],
    }

def reference(A_x, A_wqkv, A_wo, B_x, B_w1, B_b1, B_w2, B_b2):
    def _A_ref(x, wqkv, wo):
        B, S, D = x.shape
        H = 32; Dh = D // H
        qkv = (lambda x, *d: x.permute(*d))((x @ wqkv).reshape(B, S, 3, H, Dh), 2, 0, 3, 1, 4)
        q, k, v = qkv[0], qkv[1], qkv[2]
        scale = Dh ** -0.5
        scores = torch.einsum("bhqd,bhkd->bhqk", q, k) * scale
        p = _softmax(scores, axis=-1)
        o = torch.einsum("bhqk,bhkd->bhqd", p, v)
        return (lambda x, *d: x.permute(*d))(o, 0, 2, 1, 3).reshape(B, S, D) @ wo

    def _B_ref(x, w1, b1, w2, b2):
        y = _layernorm(x, axis=-1)
        h = _gelu(torch.einsum("bsd,df->bsf", y, w1) + b1)
        return torch.einsum("bsf,fd->bsd", h, w2) + b2

    x = A_x
    xn = _layernorm(x, axis=-1)
    s = _A_ref(xn, A_wqkv, A_wo)
    g = _silu(_B_ref(xn, B_w1, B_b1, B_w2, B_b2))
    return x + s * g
```

```python
from common import *

vQm=4; vQr=8
vKf=[10,16]
vVf=[22,30]
vS=[40,56]
vP=72
vO=80
vA=96; vB=97; vC=98; vD=99
vT=100
vQr0=108
vM=110; vAl=111
CH=24576
def attn_body(a, i, first=False, last_pv2=True):
    Sc=vS[i%2]; Sn=vS[(i+1)%2]
    Kn=vKf[(i+1)%2]; Kl=vKf[i%2]
    Vc=vVf[i%2]; Vn=vVf[(i+1)%2]; Vp=vVf[(i-1)%2]
    kt=((i+2)%8)*3072; vt=((i+1)%8)*3072
    a("s_waitcnt lgkmcnt(0)")
    if i==6:
        a("s_waitcnt vmcnt(0)")
        a("s_barrier")
        a("s_cmp_ge_u32 s24, 6")
        a("s_cbranch_scc1 L_att_nodma")
        a("s_mov_b32 m0, s26")
        a("s_add_u32 s27, s25, %d" % (2*CH))
        a(f"buffer_load_dwordx4 v{vD}, s[8:11], s27 offen lds")
        a(f"buffer_load_dwordx4 v{vD}, s[8:11], s27 offen offset:1024 lds")
        a(f"buffer_load_dwordx4 v{vD}, s[8:11], s27 offen offset:2048 lds")
        a("L_att_nodma:")
        a(f"v_add_u32 v{vA}, s28, v{vA}")
        a(f"v_add_u32 v{vB}, s28, v{vB}")
    a(f"ds_read2st64_b64 {vr(Kl,4)}, v{vA} offset0:{kt//512} offset1:{kt//512+1}")
    a(f"ds_read_b64 {vr(Kl+4,2)}, v{vB} offset:{kt}")
    if not first:
        a(f"v_mfma_f32_32x32x16_bf16 {vr(vO,16)}, {vr(Vp+4,4)}, {vr(vP+4,4)}, {vr(vO,16)}")
    for r in range(0,4): a(f"v_exp_f32 v{Sc+r}, v{Sc+r}")
    a(f"v_mfma_f32_32x32x8_bf16 {vr(Sn,16)}, {vr(Kn+4,2)}, {vr(vQr,2)}, 0")
    for r in range(4,8): a(f"v_exp_f32 v{Sc+r}, v{Sc+r}")
    if i==7:
        a(f"v_add_u32 v{vC}, s28, v{vC}")
    a(f"ds_read_b128 {vr(Vn,4)}, v{vC} offset:{vt}")
    a(f"ds_read_b128 {vr(Vn+4,4)}, v{vC} offset:{vt+768}")
    a(f"v_mfma_f32_32x32x16_bf16 {vr(Sn,16)}, {vr(Kn,4)}, {vr(vQm,4)}, {vr(Sn,16)}")
    for p in range(0,4): a(f"v_cvt_pk_bf16_f32 v{vP+p}, v{Sc+2*p}, v{Sc+2*p+1}")
    for r in range(8,10): a(f"v_exp_f32 v{Sc+r}, v{Sc+r}")
    a(f"v_mfma_f32_32x32x16_bf16 {vr(vO,16)}, {vr(Vc,4)}, {vr(vP,4)}, {vr(vO,16)}")
    for r in range(10,16): a(f"v_exp_f32 v{Sc+r}, v{Sc+r}")
    for p in range(4,8): a(f"v_cvt_pk_bf16_f32 v{vP+p}, v{Sc+2*p}, v{Sc+2*p+1}")

def max16(a, S, dst):
    a(f"v_max3_f32 v{dst}, v{S}, v{S+1}, v{S+2}")
    for r in range(3,15,2):
        a(f"v_max3_f32 v{dst}, v{dst}, v{S+r}, v{S+r+1}")
    a(f"v_max_f32 v{dst}, v{dst}, v{S+15}")

def xhalf(a, src, t0, t1):
    a(f"v_mov_b32 v{t0}, v{src}")
    a(f"v_mov_b32 v{t1}, v{src}")
    a("s_nop 1")
    a(f"v_permlane32_swap_b32 v{t0}, v{t1}")
    a("s_nop 1")

def stamp(a, idx, on):
    if not on: return
    a(f"s_memtime s[{60+4*idx}:{61+4*idx}]")
    a(f"s_memrealtime s[{62+4*idx}:{63+4*idx}]")

def attn_role(a, force_slow=False, prof=False):
    stamp(a,0,prof)
    a.c("head/qb decode")
    a("s_and_b32 s20, s2, 7")
    a("s_lshr_b32 s21, s2, 3")
    a("s_and_b32 s22, s21, 3")
    a("s_lshl_b32 s20, s20, 2")
    a("s_add_u32 s20, s20, s22")
    a("s_lshr_b32 s21, s21, 2")
    a("s_mul_i32 s22, s20, 196608")
    a(f"s_add_u32 s22, s22, {WS_KV}")
    srd(a, 8, 4, 5, "s22", 196608)
    a("s_mul_i32 s22, s20, 81920")
    srd(a, 12, 4, 5, "s22", 81920)
    srd(a, 16, 4, 5, WS_O, 2621440)
    a("v_lshrrev_b32 v1, 6, v0")
    a("v_and_b32 v2, 63, v0")
    a("s_nop 0")
    a("v_readfirstlane_b32 s23, v1")
    a("v_and_b32 v3, 31, v2")
    a("v_lshrrev_b32 v1, 5, v2")
    a("s_mul_i32 s29, s23, 3072")
    a(f"v_lshl_add_u32 v{vD}, v2, 4, s29")
    a("s_mov_b32 m0, s29")
    a("s_mov_b32 s27, 0")
    a(f"buffer_load_dwordx4 v{vD}, s[8:11], s27 offen lds")
    a(f"buffer_load_dwordx4 v{vD}, s[8:11], s27 offen offset:1024 lds")
    a(f"buffer_load_dwordx4 v{vD}, s[8:11], s27 offen offset:2048 lds")
    a("s_lshl_b32 s30, s21, 8")
    a("s_lshl_b32 s31, s23, 5")
    a("s_add_u32 s30, s30, s31")
    a(f"v_add_u32 v{vT}, s30, v3")
    a(f"v_lshlrev_b32 v{vT+1}, 3, v{vT}")
    a(f"v_lshl_add_u32 v{vT+2}, v1, 14, v{vT+1}")
    a("s_mov_b32 s31, 32768")
    a("s_mov_b32 s35, 65536")
    a(f"buffer_load_dwordx2 {vr(vQm,2)}, v{vT+2}, s[12:15], 0 offen")
    a(f"buffer_load_dwordx2 {vr(vQm+2,2)}, v{vT+2}, s[12:15], s31 offen")
    a(f"buffer_load_dwordx2 {vr(vQr,2)}, v{vT+1}, s[12:15], s35 offen")
    a(f"s_add_u32 s26, s29, {CH}")
    a("s_mov_b32 m0, s26")
    a(f"s_mov_b32 s27, {CH}")
    a(f"buffer_load_dwordx4 v{vD}, s[8:11], s27 offen lds")
    a(f"buffer_load_dwordx4 v{vD}, s[8:11], s27 offen offset:1024 lds")
    a(f"buffer_load_dwordx4 v{vD}, s[8:11], s27 offen offset:2048 lds")
    a(f"v_lshlrev_b32 v{vA}, 3, v3")
    a(f"v_lshl_add_u32 v{vA}, v1, 8, v{vA}")
    a(f"v_lshlrev_b32 v{vB}, 3, v3")
    a(f"v_lshl_add_u32 v{vB}, v1, 8, v{vB}")
    a(f"v_add_u32 v{vB}, 1024, v{vB}")
    a(f"v_min_u32 v{vC}, 23, v3")
    a(f"v_lshlrev_b32 v{vC}, 4, v{vC}")
    a(f"v_mul_u32_u24 v{vT+3}, 384, v1")
    a(f"v_add_u32 v{vC}, v{vC}, v{vT+3}")
    a(f"v_add_u32 v{vC}, 1536, v{vC}")
    a("s_mul_i32 s31, s20, 81920")
    a(f"v_lshlrev_b32 v{vT+4}, 3, v{vT}")
    a(f"v_lshl_add_u32 v{vT+4}, v1, 14, v{vT+4}")
    a(f"v_add_u32 v3, s31, v{vT+4}")
    for r in range(16): a(f"v_mov_b32 v{vO+r}, 0")
    a("s_mov_b32 s32, 0")
    a("s_mov_b32 s33, -1")
    a("s_waitcnt vmcnt(3)")
    a(f"v_cndmask_b32 v{vQr}, v{vQr}, 0, s[32:33]")
    a(f"v_cndmask_b32 v{vQr+1}, v{vQr+1}, 0, s[32:33]")
    a(f"v_mov_b32 v{vQr0}, v{vQr}")
    a(f"v_mov_b32 v{vQr0+1}, v{vQr+1}")
    a("s_barrier")
    a(f"ds_read2st64_b64 {vr(vKf[0],4)}, v{vA} offset0:0 offset1:1")
    a(f"ds_read_b64 {vr(vKf[0]+4,2)}, v{vB}")
    a(f"ds_read2st64_b64 {vr(vKf[1],4)}, v{vA} offset0:6 offset1:7")
    a(f"ds_read_b64 {vr(vKf[1]+4,2)}, v{vB} offset:3072")
    a(f"ds_read_b128 {vr(vVf[0],4)}, v{vC}")
    a(f"ds_read_b128 {vr(vVf[0]+4,4)}, v{vC} offset:768")
    a("s_waitcnt lgkmcnt(0)")
    S0=vS[0]
    a(f"v_mfma_f32_32x32x8_bf16 {vr(S0,16)}, {vr(vKf[0]+4,2)}, {vr(vQr,2)}, 0")
    a(f"v_mfma_f32_32x32x16_bf16 {vr(S0,16)}, {vr(vKf[0],4)}, {vr(vQm,4)}, {vr(S0,16)}")
    a("s_nop 15")
    max16(a, S0, vT)
    xhalf(a, vT, vT+1, vT+2)
    a(f"v_max_f32 v{vT}, v{vT+1}, v{vT+2}")
    a(f"v_sub_f32 v{vT}, 0, v{vT}")
    a(f"v_cvt_pk_bf16_f32 v{vT}, v{vT}, 0")
    a("s_nop 0")
    a(f"v_cndmask_b32 v{vQr}, v{vQr}, v{vT}, s[32:33]")
    a("s_nop 1")
    a(f"v_mfma_f32_32x32x8_bf16 {vr(S0,16)}, {vr(vKf[0]+4,2)}, {vr(vQr,2)}, 0")
    a(f"v_mfma_f32_32x32x16_bf16 {vr(S0,16)}, {vr(vKf[0],4)}, {vr(vQm,4)}, {vr(S0,16)}")
    for r in range(4,8): a(f"v_mov_b32 v{vP+r}, 0")
    for r in range(4,8): a(f"v_mov_b32 v{vVf[1]+r}, 0")
    a("s_mov_b32 s24, 0")
    a("s_mov_b32 s25, 0")
    a(f"s_add_u32 s26, s29, {2*CH}")
    a("s_mov_b32 s34, 0")
    a(f"s_mov_b32 s42, {-2*CH}")
    a(f"s_mov_b32 s43, {CH}")
    a("s_nop 7")
    stamp(a,1,prof)
    a("L_att_loop:")
    a("s_cmp_eq_u32 s34, 2")
    a("s_cselect_b32 s28, s42, s43")
    for i in range(8):
        attn_body(a, i)
    a("s_add_u32 s34, s34, 1")
    a("s_cmp_eq_u32 s34, 3")
    a("s_cselect_b32 s34, 0, s34")
    a("s_add_u32 s35, s34, 2")
    a("s_cmp_ge_u32 s35, 3")
    a("s_cselect_b32 s36, 3, 0")
    a("s_sub_u32 s35, s35, s36")
    a(f"s_mul_i32 s35, s35, {CH}")
    a("s_add_u32 s26, s35, s29")
    a(f"s_add_u32 s25, s25, {CH}")
    a("s_add_u32 s24, s24, 1")
    a("s_cmp_lt_u32 s24, 8")
    a("s_cbranch_scc1 L_att_loop")
    stamp(a,2,prof)
    a("s_nop 1")
    a(f"v_mfma_f32_32x32x16_bf16 {vr(vO,16)}, {vr(vVf[1]+4,4)}, {vr(vP+4,4)}, {vr(vO,16)}")
    a("s_waitcnt lgkmcnt(0)")
    a("s_nop 15")
    xhalf(a, vO+8, vT, vT+1)
    lo = "0x1f800000"; hi="0x5f800000"
    if force_slow: hi="0x3f800000"
    a(f"s_mov_b32 s36, {lo}")
    a(f"s_mov_b32 s37, {hi}")
    a(f"v_cmp_gt_f32 vcc, v{vT+1}, s36" if False else f"v_cmp_lt_f32 vcc, s36, v{vT+1}")
    a(f"v_cmp_gt_f32 s[38:39], s37, v{vT+1}")
    a("s_nop 3")
    a("s_and_b64 s[38:39], s[38:39], vcc")
    a("s_cmp_eq_u64 s[38:39], -1")
    a("s_cbranch_scc1 L_att_fin")
    attn_slow(a)
    a("L_att_fin:")
    a(f"v_rcp_f32 v{vT+1}, v{vT+1}")
    a("s_nop 0")
    for r in range(12): a(f"v_mul_f32 v{vO+r}, v{vO+r}, v{vT+1}")
    for p in range(6): a(f"v_cvt_pk_bf16_f32 v{vP+p}, v{vO+2*p}, v{vO+2*p+1}")
    a("s_mov_b32 s36, 32768")
    a("s_mov_b32 s37, 65536")
    a(f"buffer_store_dwordx2 {vr(vP,2)}, v3, s[16:19], 0 offen")
    a(f"buffer_store_dwordx2 {vr(vP+2,2)}, v3, s[16:19], s36 offen")
    a("s_mov_b64 s[40:41], exec")
    a("s_mov_b32 exec_hi, 0")
    a(f"buffer_store_dwordx2 {vr(vP+4,2)}, v3, s[16:19], s37 offen")
    a("s_mov_b64 exec, s[40:41]")
    if prof:
        kv=prof
        a("s_waitcnt vmcnt(0)")
        stamp(a,3,prof)
        a("s_load_dwordx2 s[44:45], s[0:1], 72")
        a("s_waitcnt lgkmcnt(0)")
        a(f"s_cmp_lg_u32 s2, {prof-1}")
        a("s_cbranch_scc1 L_att_noprof")
        a("s_mov_b32 s46, 256")
        a("s_mov_b32 s47, 0x00020000")
        a("s_sub_u32 s64, s64, s60"); a("s_sub_u32 s68, s68, s60"); a("s_sub_u32 s72, s72, s60"); a("s_sub_u32 s74, s74, s62")
        a("v_mov_b32 v10, s64"); a("v_mov_b32 v11, s68"); a("v_mov_b32 v12, s72"); a("v_mov_b32 v13, s74")
        a("s_lshl_b32 s48, s23, 4")
        a("v_mov_b32 v14, s48")
        a("s_mov_b64 exec, 1")
        a("buffer_store_dwordx4 v[10:13], v14, s[44:47], 0 offen")
        a("L_att_noprof:")

def attn_slow(a):
    a.c("slow path: exact running max")
    a("v_and_b32 v2, 63, v0")
    a(f"v_and_b32 v{vT}, 31, v2")
    a("v_lshrrev_b32 v1, 5, v2")
    a(f"v_lshlrev_b32 v{vA}, 3, v{vT}")
    a(f"v_lshl_add_u32 v{vA}, v1, 8, v{vA}")
    a(f"v_lshlrev_b32 v{vB}, 3, v{vT}")
    a(f"v_lshl_add_u32 v{vB}, v1, 8, v{vB}")
    a(f"v_add_u32 v{vB}, 1024, v{vB}")
    a(f"v_min_u32 v{vC}, 23, v{vT}")
    a(f"v_lshlrev_b32 v{vC}, 4, v{vC}")
    a(f"v_mul_u32_u24 v{vT+3}, 384, v1")
    a(f"v_add_u32 v{vC}, v{vC}, v{vT+3}")
    a(f"v_add_u32 v{vC}, 1536, v{vC}")
    for r in range(16): a(f"v_mov_b32 v{vO+r}, 0")
    a(f"v_mov_b32 v{vM}, 0xff800000")
    a("s_mov_b32 s25, 0")
    S=vS[0]; K=vKf[0]; V=vVf[0]
    a("L_att_slow:")
    a(f"buffer_load_dwordx2 {vr(K,2)}, v{vA}, s[8:11], s25 offen")
    a(f"buffer_load_dwordx2 {vr(K+2,2)}, v{vA}, s[8:11], s25 offen offset:512")
    a(f"buffer_load_dwordx2 {vr(K+4,2)}, v{vB}, s[8:11], s25 offen")
    a(f"buffer_load_dwordx4 {vr(V,4)}, v{vC}, s[8:11], s25 offen")
    a(f"buffer_load_dwordx4 {vr(V+4,4)}, v{vC}, s[8:11], s25 offen offset:768")
    a("s_waitcnt vmcnt(0)")
    a(f"v_mfma_f32_32x32x8_bf16 {vr(S,16)}, {vr(K+4,2)}, {vr(vQr0,2)}, 0")
    a(f"v_mfma_f32_32x32x16_bf16 {vr(S,16)}, {vr(K,4)}, {vr(vQm,4)}, {vr(S,16)}")
    a("s_nop 15")
    max16(a, S, vT)
    xhalf(a, vT, vT+1, vT+2)
    a(f"v_max3_f32 v{vT}, v{vT+1}, v{vT+2}, v{vM}")
    a(f"v_sub_f32 v{vAl}, v{vM}, v{vT}")
    a(f"v_exp_f32 v{vAl}, v{vAl}")
    a(f"v_mov_b32 v{vM}, v{vT}")
    for r in range(16): a(f"v_sub_f32 v{S+r}, v{S+r}, v{vM}")
    for r in range(16): a(f"v_exp_f32 v{S+r}, v{S+r}")
    for r in range(16): a(f"v_mul_f32 v{vO+r}, v{vO+r}, v{vAl}")
    for p in range(8): a(f"v_cvt_pk_bf16_f32 v{vP+p}, v{S+2*p}, v{S+2*p+1}")
    a("s_nop 1")
    a(f"v_mfma_f32_32x32x16_bf16 {vr(vO,16)}, {vr(V,4)}, {vr(vP,4)}, {vr(vO,16)}")
    a(f"v_mfma_f32_32x32x16_bf16 {vr(vO,16)}, {vr(V+4,4)}, {vr(vP+4,4)}, {vr(vO,16)}")
    a("s_nop 15")
    a("s_nop 3")
    a("s_add_u32 s25, s25, 3072")
    a("s_cmp_lt_u32 s25, 196608")
    a("s_cbranch_scc1 L_att_slow")
    xhalf(a, vO+8, vT, vT+1)
```

```python
WS_QI = 0
WS_KV = 0x300000
WS_H  = 0x900000
WS_O  = 0xF00000
WS_G  = 0x1180000
WS_END= 0x1400000

class Asm:
    def __init__(self):
        self.lines=[]
    def __call__(self, s=""):
        for l in s.split("\n"):
            l=l.strip()
            if l=="" : continue
            if l.endswith(":") or l.startswith(".") :
                self.lines.append(l)
            else:
                self.lines.append("    "+l)
    def c(self, s):
        self.lines.append("    ; "+s)
    def text(self):
        return "\n".join(self.lines)+"\n"

def vr(b,n):
    return f"v[{b}:{b+n-1}]" if n>1 else f"v{b}"
def sr(b,n):
    return f"s[{b}:{b+n-1}]" if n>1 else f"s{b}"

def srd(a, d, base_lo, base_hi, off, size, tmp=None):
    a(f"s_add_u32 s{d}, s{base_lo}, {off}")
    a(f"s_addc_u32 s{d+1}, s{base_hi}, 0")
    a(f"s_mov_b32 s{d+2}, {size}")
    a(f"s_mov_b32 s{d+3}, 0x00020000")

def kdesc(name, vgpr, sgpr=102, accum=None):
    if accum is None: accum=(vgpr+3)//4*4
    return f""".amdhsa_kernel {name}
  .amdhsa_next_free_vgpr {vgpr}
  .amdhsa_next_free_sgpr {sgpr}
  .amdhsa_accum_offset {accum}
  .amdhsa_group_segment_fixed_size 0
  .amdhsa_kernarg_size 88
  .amdhsa_user_sgpr_count 2
  .amdhsa_user_sgpr_kernarg_segment_ptr 1
  .amdhsa_system_sgpr_workgroup_id_x 1
.end_amdhsa_kernel
"""

def stamp(a, idx, on, base=70):
    if not on: return
    a(f"s_memtime s[{base+2*idx}:{base+1+2*idx}]")

def prof_out(a, on, n, wave_s, tag, base=70):
    if not on: return
    a("s_waitcnt vmcnt(0) lgkmcnt(0)")
    stamp(a, n, on, base)
    a("s_load_dwordx2 s[92:93], s[0:1], 72")
    a("s_waitcnt lgkmcnt(0)")
    a(f"s_cmp_lg_u32 s2, {on-1}")
    a(f"s_cbranch_scc1 L_{tag}_noprof")
    a("s_mov_b32 s94, 256")
    a("s_mov_b32 s95, 0x00020000")
    for i in range(1,5):
        if i<=n:
            a(f"s_sub_u32 s{base+2*i}, s{base+2*i}, s{base}")
            a(f"v_mov_b32 v{9+i}, s{base+2*i}")
        else:
            a(f"v_mov_b32 v{9+i}, 0")
    a(f"s_lshl_b32 s96, s{wave_s}, 4")
    a("v_mov_b32 v14, s96")
    a("s_mov_b64 exec, 1")
    a("buffer_store_dwordx4 v[10:13], v14, s[92:95], 0 offen")
    a(f"L_{tag}_noprof:")
```

```python
from common import *
import struct
def f32(x): return "0x%08x" % struct.unpack("<I", struct.pack("<f", x))[0]
SG=20480
G2_LDS=81920
vLn=2; vL15=3; vG=1
vDm=4
vAo=7
vBa=8
vT=10
vAcc=24
vAr=64
vBf=96
G2_VGPR=128

def issue(a, s, nd, NS):
    r=vAr+8*(s%4)
    a(f"s_mov_b32 s34, {s*32*16384}")
    a(f"s_add_u32 s35, s34, {4*16384}")
    a(f"buffer_load_dwordx2 {vr(r,2)}, v{vAo}, s[8:11], s34 offen")
    a(f"buffer_load_dwordx2 {vr(r+2,2)}, v{vAo}, s[8:11], s35 offen")
    a(f"buffer_load_dwordx2 {vr(r+4,2)}, v{vAo}, s[8:11], s34 offen offset:128")
    a(f"buffer_load_dwordx2 {vr(r+6,2)}, v{vAo}, s[8:11], s35 offen offset:128")
    a(f"s_mov_b32 s34, {s*128*1280}")
    for q in range(nd):
        a(f"s_add_u32 m0, s{28+q}, {(s%3)*SG}")
        a("s_nop 0")
        a(f"buffer_load_dwordx4 v{vDm+q}, s[12:15], s34 offen lds")

def bfr(a, dst, s):
    for ct in range(5):
        o=(s%3)*SG+ct*32
        a(f"ds_read_b64_tr_b16 {vr(dst+4*ct,2)}, v{vBa} offset:{o}")
        a(f"ds_read_b64_tr_b16 {vr(dst+4*ct+2,2)}, v{vBa} offset:{o+16*160}")

def loop(a, nd, NS):
    npst=4+nd
    Bb=[vBf, None]
    bfr(a, vBf, 0)
    for s in range(NS):
        a("s_waitcnt lgkmcnt(0)")
        A=vAr+8*(s%4)
        for ct in range(5):
            for tt in range(2):
                acc=vAcc+4*(ct*2+tt)
                C="0" if s==0 else vr(acc,4)
                a(f"v_mfma_f32_16x16x32_bf16 {vr(acc,4)}, {vr(vBf+4*ct,4)}, {vr(A+4*tt,4)}, {C}")
        if s<NS-1:
            rem = npst if s+2<NS else 0
            a(f"s_waitcnt vmcnt({rem})")
            a("s_barrier")
            if s+3<NS: issue(a, s+3, nd, NS)
            bfr(a, vBf, s+1)

def sig_mul(a, u, t, n):
    for i in range(n): a(f"v_mul_f32 v{t+i}, {f32(-1.4426950408889634)}, v{u+i}")
    for i in range(n): a(f"v_exp_f32 v{t+i}, v{t+i}")
    a("s_nop 0")
    for i in range(n): a(f"v_add_f32 v{t+i}, 1.0, v{t+i}")
    for i in range(n): a(f"v_rcp_f32 v{t+i}, v{t+i}")
    a("s_nop 0")
    for i in range(n): a(f"v_mul_f32 v{u+i}, v{u+i}, v{t+i}")

def rnd(a, u, n):
    for i in range(0,n,2):
        a(f"v_cvt_pk_bf16_f32 v{u+i}, v{u+i}, v{u+i+1}")
        a(f"v_and_b32 v{u+i+1}, 0xffff0000, v{u+i}")
        a(f"v_lshlrev_b32 v{u+i}, 16, v{u+i}")

def unpack(a, dst, src, n):
    for i in range(n):
        a(f"v_lshlrev_b32 v{dst+2*i}, 16, v{src+i}")
        a(f"v_and_b32 v{dst+2*i+1}, 0xffff0000, v{src+i}")

def g2_role(a, mode, tag, wgs="s2"):
    NS = 12 if mode=="mlp2" else 5
    if mode=="mlp2":
        a("s_load_dwordx4 s[56:59], s[0:1], 48")
    else:
        a("s_load_dwordx2 s[56:57], s[0:1], 16")
        a("s_load_dwordx2 s[58:59], s[0:1], 0")
        a("s_load_dwordx2 s[60:61], s[0:1], 64")
    a(f"s_and_b32 s21, {wgs}, 7")
    a(f"s_lshr_b32 s20, {wgs}, 3")
    a(f"v_lshrrev_b32 v{vT}, 6, v0")
    a(f"v_and_b32 v{vLn}, 63, v0")
    a("s_nop 0")
    a(f"v_readfirstlane_b32 s23, v{vT}")
    a(f"v_and_b32 v{vL15}, 15, v{vLn}")
    a(f"v_lshrrev_b32 v{vG}, 4, v{vLn}")
    a("s_and_b32 s24, s23, 1")
    a("s_lshr_b32 s25, s23, 1")
    if mode=="mlp2":
        srd(a, 8, 4, 5, WS_H, WS_O-WS_H)
    else:
        srd(a, 8, 4, 5, WS_O, WS_G-WS_O)
    for q in range(3):
        a(f"s_add_u32 s37, s23, {8*q}")
        a(f"s_min_u32 s37, s37, 19")
        a(f"s_lshl_b32 s{28+q}, s37, 10")
        a(f"v_lshl_add_u32 v{vT}, v{vLn}, 4, s{28+q}")
        a(f"v_lshrrev_b32 v{vT+1}, 5, v{vT}")
        a(f"v_mul_u32_u24 v{vT+1}, 13108, v{vT+1}")
        a(f"v_lshrrev_b32 v{vT+1}, 16, v{vT+1}")
        a(f"v_mul_u32_u24 v{vT+2}, 160, v{vT+1}")
        a(f"v_sub_u32 v{vT+2}, v{vT}, v{vT+2}")
        a(f"v_mul_u32_u24 v{vT+1}, 1280, v{vT+1}")
        a(f"s_mul_i32 s37, s21, 160")
        a(f"v_add3_u32 v{vDm+q}, v{vT+1}, v{vT+2}, s37")
    a("s_lshl_b32 s37, s25, 3")
    a(f"v_add_u32 v{vT}, s37, v{vG}")
    a(f"v_lshlrev_b32 v{vT}, 14, v{vT}")
    a("s_lshl_b32 s37, s20, 6")
    a("s_lshl_b32 s38, s24, 5")
    a("s_add_u32 s37, s37, s38")
    a(f"v_add_u32 v{vT+1}, s37, v{vL15}")
    a(f"v_lshl_add_u32 v{vAo}, v{vT+1}, 3, v{vT}")
    a(f"v_bfe_u32 v{vT}, v{vLn}, 2, 2")
    a(f"v_lshl_add_u32 v{vT}, v{vG}, 2, v{vT}")
    a("s_lshl_b32 s37, s25, 5")
    a(f"v_add_u32 v{vT}, s37, v{vT}")
    a(f"v_mul_u32_u24 v{vT}, 160, v{vT}")
    a(f"v_and_b32 v{vT+1}, 3, v{vLn}")
    a(f"v_lshl_add_u32 v{vBa}, v{vT+1}, 3, v{vT}")
    a("s_waitcnt lgkmcnt(0)")
    if mode=="mlp2":
        srd(a, 12, 56, 57, 0, 1536*1280)
        srd(a, 16, 4, 5, WS_G, WS_END-WS_G)
        srd(a, 44, 58, 59, 0, 1280)
    else:
        srd(a, 12, 56, 57, 0, 640*1280)
        srd(a, 16, 60, 61, 0, 2621440)
        srd(a, 44, 58, 59, 0, 2621440)
        srd(a, 48, 4, 5, WS_G, WS_END-WS_G)
    a("s_cmp_ge_u32 s23, 4")
    a(f"s_cbranch_scc1 L_{tag}_hi")
    for nd,lab in ((3,"lo"),(2,"hi")):
        if lab=="hi": a(f"L_{tag}_hi:")
        for s in range(3): issue(a, s, nd, NS)
        a(f"s_waitcnt vmcnt({2*(4+nd)})")
        a("s_barrier")
        loop(a, nd, NS)
        if lab=="lo": a(f"s_branch L_{tag}_red")
    a(f"L_{tag}_red:")
    a("s_barrier")
    a("s_mul_i32 s37, s25, 20480")
    a("s_mul_i32 s38, s24, 10240")
    a("s_add_u32 s37, s37, s38")
    a(f"v_mul_u32_u24 v{vT}, 320, v{vL15}")
    a(f"v_lshl_add_u32 v{vT}, v{vG}, 4, v{vT}")
    a(f"v_add_u32 v{vT}, s37, v{vT}")
    a("s_nop 7")
    for ct in range(5):
        for tt in range(2):
            acc=vAcc+4*(ct*2+tt)
            a(f"ds_write_b128 v{vT}, {vr(acc,4)} offset:{tt*5120+ct*64}")
    a("s_waitcnt lgkmcnt(0)")
    a("s_barrier")
    for rnd_ in range(2):
        if rnd_==1:
            a("s_cmp_ge_u32 s23, 2")
            a(f"s_cbranch_scc1 L_{tag}_done")
        a(f"v_add_u32 v{vT}, {512*rnd_}, v0")
        a(f"v_mul_u32_u24 v{vT+1}, 6554, v{vT}")
        a(f"v_lshrrev_b32 v{vT+1}, 16, v{vT+1}")
        a(f"v_mul_u32_u24 v{vT+2}, 10, v{vT+1}")
        a(f"v_sub_u32 v{vT+2}, v{vT}, v{vT+2}")
        a(f"v_lshlrev_b32 v{vT+3}, 5, v{vT}")
        a("s_lshl_b32 s37, s20, 6")
        a(f"v_add_u32 v{vT+4}, s37, v{vT+1}")
        a(f"v_mul_u32_u24 v{vT+4}, 1280, v{vT+4}")
        a(f"v_lshl_add_u32 v{vT+4}, v{vT+2}, 4, v{vT+4}")
        a("s_mul_i32 s37, s21, 160")
        a(f"v_add_u32 v{vT+4}, s37, v{vT+4}")
        P=vAcc
        if mode=="mlp2":
            a(f"v_lshl_add_u32 v{vT+5}, v{vT+2}, 4, s37")
            a(f"buffer_load_dwordx4 {vr(vAr,4)}, v{vT+5}, s[44:47], 0 offen")
        else:
            a(f"buffer_load_dwordx4 {vr(vAr,4)}, v{vT+4}, s[44:47], 0 offen")
            a(f"buffer_load_dwordx4 {vr(vAr+4,4)}, v{vT+4}, s[48:51], 0 offen")
        for kq in range(4):
            a(f"ds_read_b128 {vr(P+8*kq,4)}, v{vT+3} offset:{kq*20480}")
            a(f"ds_read_b128 {vr(P+8*kq+4,4)}, v{vT+3} offset:{kq*20480+16}")
        a("s_waitcnt lgkmcnt(0)")
        for i in range(8): a(f"v_add_f32 v{P+i}, v{P+i}, v{P+8+i}")
        for i in range(8): a(f"v_add_f32 v{P+16+i}, v{P+16+i}, v{P+24+i}")
        for i in range(8): a(f"v_add_f32 v{P+i}, v{P+i}, v{P+16+i}")
        rnd(a, P, 8)
        a("s_waitcnt vmcnt(0)")
        U=vAr+8
        if mode=="mlp2":
            unpack(a, U, vAr, 4)
            for i in range(8): a(f"v_add_f32 v{P+i}, v{P+i}, v{U+i}")
            rnd(a, P, 8)
            sig_mul(a, P, U, 8)
        else:
            unpack(a, U, vAr+4, 4)
            for i in range(8): a(f"v_mul_f32 v{P+i}, v{P+i}, v{U+i}")
            rnd(a, P, 8)
            unpack(a, U, vAr, 4)
            for i in range(8): a(f"v_add_f32 v{P+i}, v{P+i}, v{U+i}")
        for i in range(4): a(f"v_cvt_pk_bf16_f32 v{vBf+i}, v{P+2*i}, v{P+2*i+1}")
        a(f"buffer_store_dwordx4 {vr(vBf,4)}, v{vT+4}, s[16:19], 0 offen")
        a("s_nop 1")
    a(f"L_{tag}_done:")
```

```python
from common import *
import struct
def f32(x): return "0x%08x" % struct.unpack("<I", struct.pack("<f", x))[0]

STG=28672
XSTG=16384
WOFF=3*XSTG
L_ROWA=WOFF+3*STG; L_ROWB=L_ROWA+512; L_CS=L_ROWB+512; L_BIAS=L_CS+1024
K1_LDS=L_BIAS+1024
vH=1; vLn=2; vL31=3
vDma=4
vXa=104
vAf=108
vB0=184; vB1=188
vSt=12
vBias=18
vT=20
vAcc=40
vA=116
vBf=152
K1_VGPR=192
QSCALE=(20**-0.5)*1.4426950408889634

def bread(a, dst, buf, t, k):
    off=buf*STG + (16*t)*448
    for half in range(2):
        o=off+half*4*448
        base=vB0+k
        if o>=57344: base=vB1+k; o-=57344
        a(f"ds_read_b64_tr_b16 {vr(dst+2*half,2)}, v{base} offset:{o}")

def aread(a, dst, buf, t):
    a(f"ds_read_b128 {vr(dst,4)}, v{vXa+t} offset:{buf*XSTG}")
def issue_DMA(a, s):
    a(f"s_mul_i32 s34, s33, {s}")
    a(f"s_mov_b32 s48, {s*128}")
    for q in range(2):
        a(f"s_add_u32 m0, s49, {(s%3)*XSTG+q*1024}")
        a("s_nop 0")
        a(f"buffer_load_dwordx4 v{vDma+4+q}, s[8:11], s48 offen lds")
    for q in range(4):
        a(f"s_add_u32 m0, s{28+q}, {WOFF+(s%3)*STG}")
        a("s_nop 0")
        a(f"buffer_load_dwordx4 v{vDma+q}, s[12:15], s34 offen lds")

def mainloop(a, j, cform):
    nt=4 if j==0 else 3
    def fb(p,k): return vBf+16*p+4*k
    aread(a, vAf, 0, 0)
    for k in range(nt): bread(a, fb(0,k), 0, 0, k)
    step=0
    for s in range(10):
        for t in range(4):
            p=step%2
            a("s_waitcnt lgkmcnt(0)")
            if t==3 and s<9:
                a(f"s_waitcnt vmcnt({6 if s<8 else 0})")
                a("s_barrier")
                if s+3<10: issue_DMA(a,s+3)
            if t<3:
                aread(a, vAf+4*(1-p), s%3, t+1)
                for k in range(nt): bread(a, fb(1-p,k), s%3, t+1, k)
            elif s<9:
                aread(a, vAf+4*(1-p), (s+1)%3, 0)
                for k in range(nt): bread(a, fb(1-p,k), (s+1)%3, 0, k)
            Af=vAf+4*p
            for k in range(nt):
                acc=vAcc+16*k
                C = "0" if step==0 else vr(acc,16)
                if cform: a(f"v_mfma_f32_32x32x16_bf16 {vr(acc,16)}, {vr(Af,4)}, {vr(fb(p,k),4)}, {C}")
                else:     a(f"v_mfma_f32_32x32x16_bf16 {vr(acc,16)}, {vr(fb(p,k),4)}, {vr(Af,4)}, {C}")
                if j==1:
                    rs=[[0],[1,2],[3]][k]
                    for r in rs:
                        a(f"v_dot2_f32_bf16 v{vSt+(r&1)}, v{Af+r}, s32, v{vSt+(r&1)}")
                        a(f"v_dot2_f32_bf16 v{vSt+2+(r&1)}, v{Af+r}, v{Af+r}, v{vSt+2+(r&1)}")
                    if k in (0,2):
                        for r in ((0,1) if k==0 else (2,3)):
                            a(f"v_dot2_f32_bf16 v{vSt+4+(r&1)}, v{fb(p,0)+r}, s32, v{vSt+4+(r&1)}")
                else:
                    a(f"v_dot2_f32_bf16 v{vSt+4+(k&1)}, v{fb(p,0)+k}, s32, v{vSt+4+(k&1)}")
            step+=1

def xsum(a, src, t0, t1):
    a(f"v_mov_b32 v{t0}, v{src}")
    a(f"v_mov_b32 v{t1}, v{src}")
    a("s_nop 1")
    a(f"v_permlane32_swap_b32 v{t0}, v{t1}")
    a("s_nop 1")
    a(f"v_add_f32 v{src}, v{t0}, v{t1}")

def bfr(a, v, tmp=None):
    a(f"v_cvt_pk_bf16_f32 v{v}, v{v}, v{v}")
    a(f"v_and_b32 v{v}, 0xffff0000, v{v}")

def rowstats(a):
    T=vT
    a(f"v_add_f32 v{vSt}, v{vSt}, v{vSt+1}")
    a(f"v_add_f32 v{vSt+2}, v{vSt+2}, v{vSt+3}")
    xsum(a, vSt, T, T+1)
    xsum(a, vSt+2, T, T+1)
    a(f"v_mul_f32 v{T}, {f32(1.0/640)}, v{vSt}")
    a(f"v_mul_f32 v{T+1}, {f32(1.0/640)}, v{vSt+2}")
    a(f"v_fma_f32 v{T+1}, -v{T}, v{T}, v{T+1}")
    a(f"v_max_f32 v{T+1}, 0, v{T+1}")
    a(f"v_mov_b32 v{T+2}, v{T}"); bfr(a,T+2)
    a(f"v_mov_b32 v{T+3}, v{T+1}"); bfr(a,T+3)
    a(f"v_add_f32 v{T+3}, {f32(1e-5)}, v{T+3}"); bfr(a,T+3)
    a(f"v_sqrt_f32 v{T+3}, v{T+3}"); a("s_nop 0"); bfr(a,T+3)
    a(f"v_rcp_f32 v{T+4}, v{T+3}"); a("s_nop 0")
    a(f"v_mul_f32 v{T+5}, v{T+2}, v{T+4}")
    a("s_cmp_eq_u32 s22, 0")
    a("s_cbranch_scc0 L_k1_rs_nq")
    a(f"v_mul_f32 v{T+4}, {f32(QSCALE)}, v{T+4}")
    a(f"v_mul_f32 v{T+5}, {f32(QSCALE)}, v{T+5}")
    a("L_k1_rs_nq:")
    a("s_cmp_eq_u32 s22, 3")
    a("s_cbranch_scc0 L_k1_rs_nm")
    a(f"v_sub_f32 v{T+6}, v{T}, v{T+2}")
    a(f"v_mul_f32 v{T+6}, v{T+6}, v{T+4}"); bfr(a,T+6)
    a(f"v_mul_f32 v{T+7}, v{T+1}, v{T+4}")
    a(f"v_mul_f32 v{T+7}, v{T+7}, v{T+4}"); bfr(a,T+7)
    a(f"v_add_f32 v{T+7}, {f32(1e-5)}, v{T+7}"); bfr(a,T+7)
    a(f"v_sqrt_f32 v{T+7}, v{T+7}"); a("s_nop 0"); bfr(a,T+7)
    a(f"v_rcp_f32 v{T+7}, v{T+7}"); a("s_nop 0")
    a(f"v_add_f32 v{T+5}, v{T+5}, v{T+6}")
    a(f"v_mul_f32 v{T+5}, v{T+5}, v{T+7}")
    a(f"v_mul_f32 v{T+4}, v{T+4}, v{T+7}")
    a("L_k1_rs_nm:")
    a(f"s_lshl_b32 s37, s24, 7")
    a(f"v_lshl_add_u32 v{T+6}, v{vL31}, 2, s37")
    a(f"ds_write_b32 v{T+6}, v{T+4} offset:{L_ROWA}") if L_ROWA<65536 else None
    if L_ROWA>=65536:
        a(f"v_add_u32 v{T+6}, {L_ROWA}, v{T+6}")
        a(f"ds_write_b32 v{T+6}, v{T+4}")
        a(f"ds_write_b32 v{T+6}, v{T+5} offset:512")

def colstats(a):
    T=vT
    a(f"v_add_f32 v{vSt+4}, v{vSt+4}, v{vSt+5}")
    xsum(a, vSt+4, T, T+1)
    a(f"s_lshl_b32 s37, s40, 7")
    a(f"s_add_u32 s37, s37, {L_CS}")
    a(f"v_lshl_add_u32 v{T+6}, v{vL31}, 2, s37")
    a(f"ds_write_b32 v{T+6}, v{vSt+4}")
    a(f"v_lshlrev_b32 v{vBias}, 16, v{vBias}")
    a(f"ds_write_b32 v{T+6}, v{vBias} offset:1024")

def gelu_pair(a, u, t):
    c1=-2.0*0.7978845608028654*1.4426950408889634
    c2=c1*0.044715
    a(f"v_pk_mul_f32 {vr(t,2)}, {vr(u,2)}, {vr(u,2)}")
    a(f"v_pk_fma_f32 {vr(t,2)}, {vr(t,2)}, s[50:51], {vr(vT+16,2)}")
    a(f"v_pk_mul_f32 {vr(t,2)}, {vr(t,2)}, {vr(u,2)}")
    a(f"v_exp_f32 v{t}, v{t}")
    a(f"v_exp_f32 v{t+1}, v{t+1}")
    a("s_nop 0")
    a(f"v_pk_add_f32 {vr(t,2)}, {vr(t,2)}, 1.0 op_sel_hi:[1,0]")
    a(f"v_rcp_f32 v{t}, v{t}")
    a(f"v_rcp_f32 v{t+1}, v{t+1}")
    a("s_nop 0")
    a(f"v_pk_mul_f32 {vr(u,2)}, {vr(u,2)}, {vr(t,2)}")

def epi_ct(a, j, typ):
    nt=4 if j==0 else 3
    T=vT; tag=f"L_k1_e{typ}{j}"
    Al=T; Be=T+2
    a(f"s_lshl_b32 s37, s24, 7")
    a(f"s_add_u32 s37, s37, {L_ROWA}")
    a(f"v_lshl_add_u32 v{T+4}, v{vL31}, 2, s37")
    a(f"ds_read_b32 v{Al}, v{T+4}")
    a(f"ds_read_b32 v{Be}, v{T+4} offset:512")
    a(f"s_lshl_b32 s38, s20, 7")
    a(f"s_lshl_b32 s39, s24, 5")
    a(f"s_add_u32 s38, s38, s39")
    a(f"v_add_u32 v{T+5}, s38, v{vL31}")
    if typ==0:
        a(f"v_lshlrev_b32 v{T+6}, 3, v{T+5}")
    elif typ==1:
        a(f"s_lshr_b32 s39, s38, 5")
        a(f"s_mul_i32 s39, s39, 3072")
        a(f"v_lshl_add_u32 v{T+6}, v{vL31}, 3, s39")
        a(f"v_mov_b32 v{T+18}, 0x3f80")
        a(f"v_mov_b32 v{T+19}, 0")
    else:
        a(f"v_lshlrev_b32 v{T+6}, 3, v{T+5}")
        a(f"v_lshl_add_u32 v{T+6}, v{vH}, 14, v{T+6}")
        c1=-2.0*0.7978845608028654*1.4426950408889634
        c2=c1*0.044715
        a(f"s_mov_b32 s50, {f32(c2)}"); a(f"s_mov_b32 s51, {f32(c2)}")
        a(f"v_mov_b32 v{T+16}, {f32(c1)}"); a(f"v_mov_b32 v{T+17}, {f32(c1)}")
    a(f"v_lshlrev_b32 v{T+8}, 4, v{vH}")
    a(f"v_add_u32 v{T+8}, {L_CS}, v{T+8}")
    CS=vBf
    for k in range(nt):
        a(f"s_cmp_ge_u32 s{40+k}, s36")
        a(f"s_cbranch_scc1 {tag}_skip{k}")
        a(f"s_lshl_b32 s37, s{40+k}, 7")
        a(f"v_add_u32 v{T+9}, s37, v{T+8}")
        for g in range(4):
            a(f"ds_read_b128 {vr(CS+4*g,4)}, v{T+9} offset:{32*g}")
        if typ==3:
            for g in range(4):
                a(f"ds_read_b128 {vr(CS+16+4*g,4)}, v{T+9} offset:{1024+32*g}")
        a("s_waitcnt lgkmcnt(0)")
        acc=vAcc+16*k
        for pr in range(8):
            c=CS+2*pr; u=acc+2*pr
            if typ==3:
                a(f"v_pk_fma_f32 {vr(c,2)}, {vr(c,2)}, {vr(Be,2)}, {vr(c+16,2)} op_sel_hi:[1,0,1] neg_lo:[0,0,1] neg_hi:[0,0,1]")
            else:
                a(f"v_pk_mul_f32 {vr(c,2)}, {vr(c,2)}, {vr(Be,2)} op_sel_hi:[1,0]")
            a(f"v_pk_fma_f32 {vr(u,2)}, {vr(u,2)}, {vr(Al,2)}, {vr(c,2)} op_sel_hi:[1,0,1] neg_lo:[0,0,1] neg_hi:[0,0,1]")
        if typ==3:
            for pr in range(8):
                gelu_pair(a, acc+2*pr, T+10+2*(pr%2))
        for pr in range(8):
            a(f"v_cvt_pk_bf16_f32 v{acc+pr}, v{acc+2*pr}, v{acc+2*pr+1}") if False else None
        for pr in range(8):
            a(f"v_cvt_pk_bf16_f32 v{CS+pr}, v{acc+2*pr}, v{acc+2*pr+1}")
        if typ==3:
            a(f"s_lshl_b32 s37, s{40+k}, 5")
            a(f"s_add_u32 s37, s37, s27")
            a(f"s_lshl_b32 s37, s37, 12")
            for g in range(4):
                a(f"buffer_store_dwordx2 {vr(CS+2*g,2)}, v{T+6}, s[16:19], s37 offen")
                if g<3: a(f"s_add_u32 s37, s37, 32768")
        else:
            a(f"s_mul_i32 s37, s35, 56")
            a(f"s_lshl_b32 s39, s{40+k}, 3")
            a(f"s_add_u32 s37, s37, s39")
            for g in range(4):
                a(f"v_add_u32 v{T+10}, s37, v{vH}")
                if g: a(f"v_add_u32 v{T+10}, {2*g}, v{T+10}")
                if typ==0:
                    a(f"v_lshl_add_u32 v{T+13}, v{T+10}, 14, v{T+6}")
                    a(f"buffer_store_dwordx2 {vr(CS+2*g,2)}, v{T+13}, s[16:19], 0 offen")
                else:
                    a(f"v_mul_u32_u24 v{T+11}, 205, v{T+10}")
                    a(f"v_lshrrev_b32 v{T+11}, 10, v{T+11}")
                    a(f"v_mul_u32_u24 v{T+12}, 5, v{T+11}")
                    a(f"v_sub_u32 v{T+12}, v{T+10}, v{T+12}")
                    a(f"v_mul_u32_u24 v{T+13}, 0x30000, v{T+11}")
                    a(f"v_lshl_add_u32 v{T+13}, v{T+12}, 8, v{T+13}")
                    a(f"v_add_u32 v{T+13}, v{T+13}, v{T+6}")
                    a(f"v_cmp_eq_u32 vcc, 4, v{T+12}")
                    a(f"buffer_store_dwordx2 {vr(CS+2*g,2)}, v{T+13}, s[16:19], 0 offen")
                    a("s_and_saveexec_b64 s[54:55], vcc")
                    a(f"s_cbranch_execz {tag}_nc{k}{g}")
                    a(f"buffer_store_dwordx2 {vr(T+18,2)}, v{T+13}, s[16:19], 0 offen offset:256")
                    a(f"{tag}_nc{k}{g}:")
                    a("s_mov_b64 exec, s[54:55]")
        a(f"{tag}_skip{k}:")

def epi_v(a, j):
    nt=4 if j==0 else 3
    T=vT; tag=f"L_k1_e2{j}"
    AL=vA; BE=vA+16
    a(f"s_lshl_b32 s37, s24, 7")
    a(f"s_add_u32 s37, s37, {L_ROWA}")
    a(f"v_lshl_add_u32 v{T+4}, v{vH}, 4, s37")
    for g in range(4):
        a(f"ds_read_b128 {vr(AL+4*g,4)}, v{T+4} offset:{32*g}")
        a(f"ds_read_b128 {vr(BE+4*g,4)}, v{T+4} offset:{512+32*g}")
    a(f"s_lshl_b32 s38, s20, 2")
    a(f"s_add_u32 s38, s38, s24")
    a(f"s_mul_i32 s38, s38, 3072")
    a(f"s_add_u32 s38, s38, 1536")
    a(f"v_mul_u32_u24 v{T+5}, 384, v{vH}")
    a(f"v_add_u32 v{T+5}, s38, v{T+5}")
    a(f"v_lshlrev_b32 v{T+8}, 2, v{vL31}")
    a(f"v_add_u32 v{T+8}, {L_CS}, v{T+8}")
    P=vBf
    for k in range(nt):
        a(f"s_cmp_ge_u32 s{40+k}, s36")
        a(f"s_cbranch_scc1 {tag}_skip{k}")
        a(f"s_lshl_b32 s37, s{40+k}, 7")
        a(f"v_add_u32 v{T+9}, s37, v{T+8}")
        a(f"ds_read_b32 v{T}, v{T+9}")
        a(f"s_mul_i32 s37, s35, 224")
        a(f"s_lshl_b32 s39, s{40+k}, 5")
        a(f"s_add_u32 s37, s37, s39")
        a(f"v_add_u32 v{T+10}, s37, v{vL31}")
        a(f"v_mul_u32_u24 v{T+11}, 3277, v{T+10}")
        a(f"v_lshrrev_b32 v{T+11}, 16, v{T+11}")
        a(f"v_mul_u32_u24 v{T+12}, 20, v{T+11}")
        a(f"v_sub_u32 v{T+12}, v{T+10}, v{T+12}")
        a(f"v_mul_u32_u24 v{T+13}, 0x30000, v{T+11}")
        a(f"v_lshl_add_u32 v{T+13}, v{T+12}, 4, v{T+13}")
        a(f"v_add_u32 v{T+13}, v{T+13}, v{T+5}")
        a("s_waitcnt lgkmcnt(0)")
        acc=vAcc+16*k
        for pr in range(8):
            u=acc+2*pr
            a(f"v_pk_mul_f32 {vr(T+2,2)}, {vr(BE+2*pr,2)}, {vr(T,2)} op_sel_hi:[1,0]")
            a(f"v_pk_fma_f32 {vr(u,2)}, {vr(u,2)}, {vr(AL+2*pr,2)}, {vr(T+2,2)} neg_lo:[0,0,1] neg_hi:[0,0,1]")
        for pr in range(8):
            a(f"v_cvt_pk_bf16_f32 v{P+pr}, v{acc+2*pr}, v{acc+2*pr+1}")
        a(f"buffer_store_dwordx4 {vr(P,4)}, v{T+13}, s[16:19], 0 offen")
        a(f"buffer_store_dwordx4 {vr(P+4,4)}, v{T+13}, s[16:19], 0 offen offset:768")
        a(f"v_cmp_eq_u32 vcc, 0, v{T+12}")
        a(f"v_mov_b32 v{T+14}, 0x3f803f80")
        a("s_nop 0")
        for r in range(4): a(f"v_cndmask_b32 v{P+8+r}, 0, v{T+14}, vcc")
        a(f"v_cmp_gt_u32 vcc, 4, v{T+12}")
        a("s_and_saveexec_b64 s[54:55], vcc")
        a(f"s_cbranch_execz {tag}_nc{k}")
        a(f"buffer_store_dwordx4 {vr(P+8,4)}, v{T+13}, s[16:19], 0 offen offset:320")
        a(f"buffer_store_dwordx4 {vr(P+8,4)}, v{T+13}, s[16:19], 0 offen offset:1088")
        a(f"{tag}_nc{k}:")
        a("s_mov_b64 exec, s[54:55]")
        a("s_nop 1")
        a(f"{tag}_skip{k}:")

def k1(a, prof=0):
    a(".p2align 8")
    a(".globl k1_kernel")
    a(".type k1_kernel,@function")
    a("k1_kernel:")
    a("s_load_dwordx4 s[56:59], s[0:1], 0")
    a("s_load_dwordx4 s[60:63], s[0:1], 32")
    a("s_load_dwordx2 s[4:5], s[0:1], 80")
    a("s_cmp_ge_u32 s2, 256")
    a("s_cbranch_scc1 L_k1_end")
    stamp(a,0,prof)
    a("s_and_b32 s37, s2, 7")
    a("s_lshr_b32 s38, s2, 3")
    a("s_and_b32 s20, s37, 1")
    a("s_lshl_b32 s20, s20, 3")
    a("s_and_b32 s39, s38, 7")
    a("s_add_u32 s20, s20, s39")
    a("s_lshr_b32 s21, s37, 1")
    a("s_lshl_b32 s21, s21, 2")
    a("s_lshr_b32 s39, s38, 3")
    a("s_add_u32 s21, s21, s39")
    a(f"v_lshrrev_b32 v{vT}, 6, v0")
    a(f"v_and_b32 v{vLn}, 63, v0")
    a("s_nop 0")
    a(f"v_readfirstlane_b32 s23, v{vT}")
    a(f"v_and_b32 v{vL31}, 31, v{vLn}")
    a(f"v_lshrrev_b32 v{vH}, 5, v{vLn}")
    a("s_and_b32 s24, s23, 3")
    a("s_lshr_b32 s25, s23, 2")
    a("s_mov_b32 s32, 0x3f803f80")
    a("s_cmp_ge_u32 s21, 9")
    a("s_cbranch_scc1 L_k1_mlp")
    a("s_mul_i32 s22, s21, 43")
    a("s_lshr_b32 s22, s22, 7")
    a("s_mul_i32 s37, s22, 3")
    a("s_sub_u32 s35, s21, s37")
    a("s_mul_i32 s27, s22, 640")
    a("s_mul_i32 s37, s35, 224")
    a("s_add_u32 s27, s27, s37")
    a("s_mov_b32 s26, 3840")
    a("s_cmp_eq_u32 s35, 2")
    a("s_cselect_b32 s36, 6, 7")
    a("s_waitcnt lgkmcnt(0)")
    srd(a, 12, 58, 59, 0, 640*3840)
    a("s_cmp_eq_u32 s22, 0")
    a(f"s_mov_b32 s38, {WS_KV}")
    a(f"s_cselect_b32 s37, {WS_QI}, s38")
    a(f"s_mov_b32 s38, {WS_H-WS_KV}")
    a(f"s_cselect_b32 s18, {WS_KV-WS_QI}, s38")
    a("s_add_u32 s16, s4, s37")
    a("s_addc_u32 s17, s5, 0")
    a("s_mov_b32 s19, 0x00020000")
    a("s_branch L_k1_common")
    a("L_k1_mlp:")
    a("s_mov_b32 s22, 3")
    a("s_sub_u32 s35, s21, 9")
    a("s_mul_i32 s27, s35, 224")
    a("s_mov_b32 s26, 3072")
    a("s_cmp_eq_u32 s35, 6")
    a("s_cselect_b32 s36, 6, 7")
    a("s_waitcnt lgkmcnt(0)")
    srd(a, 12, 60, 61, 0, 640*3072)
    srd(a, 16, 4, 5, WS_H, WS_O-WS_H)
    a("L_k1_common:")
    srd(a, 8, 56, 57, 0, 2621440)
    srd(a, 44, 62, 63, 0, 3072)
    a("s_lshl_b32 s33, s26, 6")
    for k in range(4):
        a(f"s_add_u32 s37, s24, {k}")
        a(f"s_and_b32 s38, s37, 3")
        a(f"s_cmp_ge_u32 s37, 3"); a(f"s_cselect_b32 s39, 3, 0"); a(f"s_sub_u32 s37, s37, s39")
        a(f"s_cmp_ge_u32 s37, 3"); a(f"s_cselect_b32 s39, 3, 0"); a(f"s_sub_u32 s37, s37, s39")
        a(f"s_add_u32 s37, s37, 4")
        a(f"s_cmp_eq_u32 s25, 0")
        a(f"s_cselect_b32 s{40+k}, s38, s37")
    a("s_lshl_b32 s37, s40, 5")
    a("s_add_u32 s37, s37, s27")
    a(f"v_add_u32 v{vT}, s37, v{vL31}")
    a(f"v_lshlrev_b32 v{vT}, 1, v{vT}")
    a(f"buffer_load_ushort v{vBias}, v{vT}, s[44:47], 0 offen")
    for q in range(4):
        a(f"s_add_u32 s37, s23, {8*q}")
        a(f"s_min_u32 s37, s37, 27")
        a(f"s_lshl_b32 s{28+q}, s37, 10")
        a(f"v_lshl_add_u32 v{vT}, v{vLn}, 4, s{28+q}")
        a(f"v_lshrrev_b32 v{vT+1}, 6, v{vT}")
        a(f"v_mul_u32_u24 v{vT+1}, 9363, v{vT+1}")
        a(f"v_lshrrev_b32 v{vT+1}, 16, v{vT+1}")
        a(f"v_mul_u32_u24 v{vT+2}, 448, v{vT+1}")
        a(f"v_sub_u32 v{vT+2}, v{vT}, v{vT+2}")
        a(f"v_mul_lo_u32 v{vT+1}, v{vT+1}, s26")
        a(f"s_lshl_b32 s37, s27, 1")
        a(f"v_add3_u32 v{vDma+q}, v{vT+1}, v{vT+2}, s37")
    a("s_lshl_b32 s49, s23, 11")
    for q in range(2):
        a(f"s_lshl_b32 s37, s23, 4")
        a(f"s_add_u32 s37, s37, {8*q}")
        a(f"v_lshrrev_b32 v{vT}, 3, v{vLn}")
        a(f"v_add_u32 v{vT}, s37, v{vT}")
        a(f"v_bfe_u32 v{vT+1}, v{vT}, 1, 3")
        a(f"v_and_b32 v{vT+2}, 7, v{vLn}")
        a(f"v_xor_b32 v{vT+1}, v{vT+1}, v{vT+2}")
        a("s_lshl_b32 s38, s20, 7")
        a(f"v_add_u32 v{vT}, s38, v{vT}")
        a(f"v_mul_u32_u24 v{vT}, 1280, v{vT}")
        a(f"v_lshl_add_u32 v{vDma+4+q}, v{vT+1}, 4, v{vT}")
    issue_DMA(a,0); issue_DMA(a,1); issue_DMA(a,2)
    a("s_lshl_b32 s37, s24, 5")
    a(f"v_add_u32 v{vT}, s37, v{vL31}")
    a(f"v_bfe_u32 v{vT+1}, v{vT}, 1, 3")
    a(f"v_lshlrev_b32 v{vT}, 7, v{vT}")
    for t in range(4):
        a(f"v_add_u32 v{vT+2}, {2*t}, v{vH}")
        a(f"v_xor_b32 v{vT+2}, v{vT+2}, v{vT+1}")
        a(f"v_lshl_add_u32 v{vXa+t}, v{vT+2}, 4, v{vT}")
    a(f"v_bfe_u32 v{vT}, v{vLn}, 2, 2")
    a(f"v_lshl_add_u32 v{vT}, v{vH}, 3, v{vT}")
    a(f"v_mul_u32_u24 v{vT}, 448, v{vT}")
    a(f"v_and_b32 v{vT+1}, 3, v{vLn}")
    a(f"v_lshl_add_u32 v{vT}, v{vT+1}, 3, v{vT}")
    a(f"v_bfe_u32 v{vT+1}, v{vLn}, 4, 1")
    a(f"v_lshl_add_u32 v{vT}, v{vT+1}, 5, v{vT}")
    for k in range(4):
        a(f"s_lshl_b32 s37, s{40+k}, 6")
        a(f"s_add_u32 s37, s37, {WOFF}")
        a(f"v_add_u32 v{vB0+k}, s37, v{vT}")
        a(f"v_add_u32 v{vB1+k}, 57344, v{vB0+k}")
    for r in range(6): a(f"v_mov_b32 v{vSt+r}, 0")
    a("s_waitcnt vmcnt(12)")
    a("s_barrier")
    stamp(a,1,prof)
    a("s_cmp_eq_u32 s22, 2")
    a("s_cbranch_scc1 L_k1_cform")
    a("s_cmp_eq_u32 s25, 0")
    a("s_cbranch_scc0 L_k1_ml_t1")
    mainloop(a,0,False)
    a("s_branch L_k1_post0")
    a("L_k1_ml_t1:")
    mainloop(a,1,False)
    a("s_branch L_k1_post1")
    a("L_k1_cform:")
    a("s_cmp_eq_u32 s25, 0")
    a("s_cbranch_scc0 L_k1_ml_c1")
    mainloop(a,0,True)
    a("s_branch L_k1_post0")
    a("L_k1_ml_c1:")
    mainloop(a,1,True)
    a("L_k1_post1:")
    a("s_nop 3")
    rowstats(a)
    a("L_k1_post0:")
    a("s_nop 3")
    colstats(a)
    a("s_waitcnt lgkmcnt(0)")
    a("s_barrier")
    stamp(a,2,prof)
    for typ in range(4):
        a(f"s_cmp_lg_u32 s22, {typ}")
        a(f"s_cbranch_scc1 L_k1_nt{typ}")
        a("s_cmp_eq_u32 s25, 0")
        a(f"s_cbranch_scc0 L_k1_ep{typ}_1")
        if typ==2: epi_v(a,0)
        else: epi_ct(a,0,typ)
        a("s_branch L_k1_fin")
        a(f"L_k1_ep{typ}_1:")
        if typ==2: epi_v(a,1)
        else: epi_ct(a,1,typ)
        a("s_branch L_k1_fin")
        a(f"L_k1_nt{typ}:")
    a("L_k1_fin:")
    stamp(a,3,prof)
    prof_out(a,prof,4,23,"k1")
    a("L_k1_end:")
    a("s_endpgm")
```

```python
import sys
from common import *
import attn, k1, g2
NAME="recurrent_scan__softmax_full_mha__mixer_channel_mlp__prompt"
HDR=open("cdna_kernels/"+NAME+".s.ref").read().split("; Override launch geometry")[0]

def k2(a, force_slow=False, prof=0):
    a(".p2align 8")
    a(".globl k2_kernel")
    a(".type k2_kernel,@function")
    a("k2_kernel:")
    a("s_load_dwordx2 s[4:5], s[0:1], 80")
    a("s_cmp_ge_u32 s2, 512")
    a("s_cbranch_scc1 L_k2_end")
    a("s_waitcnt lgkmcnt(0)")
    a("s_cmp_ge_u32 s2, 256")
    a("s_cbranch_scc1 L_k2_mlp")
    attn.attn_role(a, force_slow, prof)
    a("s_branch L_k2_end")
    a("L_k2_mlp:")
    a("s_sub_u32 s3, s2, 256")
    g2.g2_role(a, "mlp2", "m2", "s3")
    a("L_k2_end:")
    a("s_endpgm")

def k3(a):
    a(".p2align 8")
    a(".globl k3_kernel")
    a(".type k3_kernel,@function")
    a("k3_kernel:")
    a("s_load_dwordx2 s[4:5], s[0:1], 80")
    a("s_cmp_ge_u32 s2, 256")
    a("s_cbranch_scc1 L_k3_end")
    a("s_waitcnt lgkmcnt(0)")
    g2.g2_role(a, "k3", "k3", "s2")
    a("L_k3_end:")
    a("s_endpgm")

def build(out, force_slow=False, prof=0, prof1=0):
    a=Asm()
    launches=[("k1_kernel",(256,1,1),(512,1,1),k1.K1_LDS),("k2_kernel",(512,1,1),(512,1,1),81920),("k3_kernel",(256,1,1),(512,1,1),81920)]
    txt=HDR
    for (k,g,b,l) in launches:
        txt+=f"; @launch kernel={k} grid=({g[0]},{g[1]},{g[2]}) block=({b[0]},{b[1]},{b[2]}) lds={l}\n"
    txt+='.amdgcn_target "amdgcn-amd-amdhsa--gfx950"\n.text\n'
    k1.k1(a, prof1)
    k2(a, force_slow, prof)
    k3(a)
    txt+=a.text()
    txt+='.section .rodata,"a"\n.p2align 6\n'
    txt+=kdesc("k1_kernel",k1.K1_VGPR)
    txt+=".p2align 6\n"+kdesc("k2_kernel",128)
    txt+=".p2align 6\n"+kdesc("k3_kernel",128)
    open(out,"w").write(txt)
if __name__=="__main__":
    build(sys.argv[1], force_slow=("slow" in sys.argv), prof=(100 if "prof" in sys.argv else 0), prof1=int([x[3:] for x in sys.argv if x.startswith("p1=")][0]) if any(x.startswith("p1=") for x in sys.argv) else 0)
```

```python
from common import *

vQm=4; vQr=8
vKf=[10,16]
vVf=[22,30]
vS=[40,56]
vP=72
vO=80
vA=96; vB=97; vC=98; vD=99
vT=100
vQr0=108
vM=110; vAl=111
CH=24576
def attn_body(a, i, first=False, last_pv2=True):
    Sc=vS[i%2]; Sn=vS[(i+1)%2]
    Kn=vKf[(i+1)%2]; Kl=vKf[i%2]
    Vc=vVf[i%2]; Vn=vVf[(i+1)%2]; Vp=vVf[(i-1)%2]
    kt=((i+2)%8)*3072; vt=((i+1)%8)*3072
    a("s_waitcnt lgkmcnt(0)")
    if i==6:
        a("s_waitcnt vmcnt(0)")
        a("s_barrier")
        a("s_cmp_ge_u32 s24, 6")
        a("s_cbranch_scc1 L_att_nodma")
        a("s_mov_b32 m0, s26")
        a("s_add_u32 s27, s25, %d" % (2*CH))
        a(f"buffer_load_dwordx4 v{vD}, s[8:11], s27 offen lds")
        a(f"buffer_load_dwordx4 v{vD}, s[8:11], s27 offen offset:1024 lds")
        a(f"buffer_load_dwordx4 v{vD}, s[8:11], s27 offen offset:2048 lds")
        a("L_att_nodma:")
        a(f"v_add_u32 v{vA}, s28, v{vA}")
        a(f"v_add_u32 v{vB}, s28, v{vB}")
    a(f"ds_read2st64_b64 {vr(Kl,4)}, v{vA} offset0:{kt//512} offset1:{kt//512+1}")
    a(f"ds_read_b64 {vr(Kl+4,2)}, v{vB} offset:{kt}")
    if not first:
        a(f"v_mfma_f32_32x32x16_bf16 {vr(vO,16)}, {vr(Vp+4,4)}, {vr(vP+4,4)}, {vr(vO,16)}")
    for r in range(0,4): a(f"v_exp_f32 v{Sc+r}, v{Sc+r}")
    a(f"v_mfma_f32_32x32x8_bf16 {vr(Sn,16)}, {vr(Kn+4,2)}, {vr(vQr,2)}, 0")
    for r in range(4,8): a(f"v_exp_f32 v{Sc+r}, v{Sc+r}")
    if i==7:
        a(f"v_add_u32 v{vC}, s28, v{vC}")
    a(f"ds_read_b128 {vr(Vn,4)}, v{vC} offset:{vt}")
    a(f"ds_read_b128 {vr(Vn+4,4)}, v{vC} offset:{vt+768}")
    a(f"v_mfma_f32_32x32x16_bf16 {vr(Sn,16)}, {vr(Kn,4)}, {vr(vQm,4)}, {vr(Sn,16)}")
    for p in range(0,4): a(f"v_cvt_pk_bf16_f32 v{vP+p}, v{Sc+2*p}, v{Sc+2*p+1}")
    for r in range(8,10): a(f"v_exp_f32 v{Sc+r}, v{Sc+r}")
    a(f"v_mfma_f32_32x32x16_bf16 {vr(vO,16)}, {vr(Vc,4)}, {vr(vP,4)}, {vr(vO,16)}")
    for r in range(10,16): a(f"v_exp_f32 v{Sc+r}, v{Sc+r}")
    for p in range(4,8): a(f"v_cvt_pk_bf16_f32 v{vP+p}, v{Sc+2*p}, v{Sc+2*p+1}")

def max16(a, S, dst):
    a(f"v_max3_f32 v{dst}, v{S}, v{S+1}, v{S+2}")
    for r in range(3,15,2):
        a(f"v_max3_f32 v{dst}, v{dst}, v{S+r}, v{S+r+1}")
    a(f"v_max_f32 v{dst}, v{dst}, v{S+15}")

def xhalf(a, src, t0, t1):
    a(f"v_mov_b32 v{t0}, v{src}")
    a(f"v_mov_b32 v{t1}, v{src}")
    a("s_nop 1")
    a(f"v_permlane32_swap_b32 v{t0}, v{t1}")
    a("s_nop 1")

def stamp(a, idx, on):
    if not on: return
    a(f"s_memtime s[{60+4*idx}:{61+4*idx}]")
    a(f"s_memrealtime s[{62+4*idx}:{63+4*idx}]")

def attn_role(a, force_slow=False, prof=False):
    stamp(a,0,prof)
    a.c("head/qb decode")
    a("s_and_b32 s20, s2, 7")
    a("s_lshr_b32 s21, s2, 3")
    a("s_and_b32 s22, s21, 3")
    a("s_lshl_b32 s20, s20, 2")
    a("s_add_u32 s20, s20, s22")
    a("s_lshr_b32 s21, s21, 2")
    a("s_mul_i32 s22, s20, 196608")
    a(f"s_add_u32 s22, s22, {WS_KV}")
    srd(a, 8, 4, 5, "s22", 196608)
    a("s_mul_i32 s22, s20, 81920")
    srd(a, 12, 4, 5, "s22", 81920)
    srd(a, 16, 4, 5, WS_O, 2621440)
    a("v_lshrrev_b32 v1, 6, v0")
    a("v_and_b32 v2, 63, v0")
    a("s_nop 0")
    a("v_readfirstlane_b32 s23, v1")
    a("v_and_b32 v3, 31, v2")
    a("v_lshrrev_b32 v1, 5, v2")
    a("s_mul_i32 s29, s23, 3072")
    a(f"v_lshl_add_u32 v{vD}, v2, 4, s29")
    a("s_mov_b32 m0, s29")
    a("s_mov_b32 s27, 0")
    a(f"buffer_load_dwordx4 v{vD}, s[8:11], s27 offen lds")
    a(f"buffer_load_dwordx4 v{vD}, s[8:11], s27 offen offset:1024 lds")
    a(f"buffer_load_dwordx4 v{vD}, s[8:11], s27 offen offset:2048 lds")
    a("s_lshl_b32 s30, s21, 8")
    a("s_lshl_b32 s31, s23, 5")
    a("s_add_u32 s30, s30, s31")
    a(f"v_add_u32 v{vT}, s30, v3")
    a(f"v_lshlrev_b32 v{vT+1}, 3, v{vT}")
    a(f"v_lshl_add_u32 v{vT+2}, v1, 14, v{vT+1}")
    a("s_mov_b32 s31, 32768")
    a("s_mov_b32 s35, 65536")
    a(f"buffer_load_dwordx2 {vr(vQm,2)}, v{vT+2}, s[12:15], 0 offen")
    a(f"buffer_load_dwordx2 {vr(vQm+2,2)}, v{vT+2}, s[12:15], s31 offen")
    a(f"buffer_load_dwordx2 {vr(vQr,2)}, v{vT+1}, s[12:15], s35 offen")
    a(f"s_add_u32 s26, s29, {CH}")
    a("s_mov_b32 m0, s26")
    a(f"s_mov_b32 s27, {CH}")
    a(f"buffer_load_dwordx4 v{vD}, s[8:11], s27 offen lds")
    a(f"buffer_load_dwordx4 v{vD}, s[8:11], s27 offen offset:1024 lds")
    a(f"buffer_load_dwordx4 v{vD}, s[8:11], s27 offen offset:2048 lds")
    a(f"v_lshlrev_b32 v{vA}, 3, v3")
    a(f"v_lshl_add_u32 v{vA}, v1, 8, v{vA}")
    a(f"v_lshlrev_b32 v{vB}, 3, v3")
    a(f"v_lshl_add_u32 v{vB}, v1, 8, v{vB}")
    a(f"v_add_u32 v{vB}, 1024, v{vB}")
    a(f"v_min_u32 v{vC}, 23, v3")
    a(f"v_lshlrev_b32 v{vC}, 4, v{vC}")
    a(f"v_mul_u32_u24 v{vT+3}, 384, v1")
    a(f"v_add_u32 v{vC}, v{vC}, v{vT+3}")
    a(f"v_add_u32 v{vC}, 1536, v{vC}")
    a("s_mul_i32 s31, s20, 81920")
    a(f"v_lshlrev_b32 v{vT+4}, 3, v{vT}")
    a(f"v_lshl_add_u32 v{vT+4}, v1, 14, v{vT+4}")
    a(f"v_add_u32 v3, s31, v{vT+4}")
    for r in range(16): a(f"v_mov_b32 v{vO+r}, 0")
    a("s_mov_b32 s32, 0")
    a("s_mov_b32 s33, -1")
    a("s_waitcnt vmcnt(3)")
    a(f"v_cndmask_b32 v{vQr}, v{vQr}, 0, s[32:33]")
    a(f"v_cndmask_b32 v{vQr+1}, v{vQr+1}, 0, s[32:33]")
    a(f"v_mov_b32 v{vQr0}, v{vQr}")
    a(f"v_mov_b32 v{vQr0+1}, v{vQr+1}")
    a("s_barrier")
    a(f"ds_read2st64_b64 {vr(vKf[0],4)}, v{vA} offset0:0 offset1:1")
    a(f"ds_read_b64 {vr(vKf[0]+4,2)}, v{vB}")
    a(f"ds_read2st64_b64 {vr(vKf[1],4)}, v{vA} offset0:6 offset1:7")
    a(f"ds_read_b64 {vr(vKf[1]+4,2)}, v{vB} offset:3072")
    a(f"ds_read_b128 {vr(vVf[0],4)}, v{vC}")
    a(f"ds_read_b128 {vr(vVf[0]+4,4)}, v{vC} offset:768")
    a("s_waitcnt lgkmcnt(0)")
    S0=vS[0]
    a(f"v_mfma_f32_32x32x8_bf16 {vr(S0,16)}, {vr(vKf[0]+4,2)}, {vr(vQr,2)}, 0")
    a(f"v_mfma_f32_32x32x16_bf16 {vr(S0,16)}, {vr(vKf[0],4)}, {vr(vQm,4)}, {vr(S0,16)}")
    a("s_nop 15")
    max16(a, S0, vT)
    xhalf(a, vT, vT+1, vT+2)
    a(f"v_max_f32 v{vT}, v{vT+1}, v{vT+2}")
    a(f"v_sub_f32 v{vT}, 0, v{vT}")
    a(f"v_cvt_pk_bf16_f32 v{vT}, v{vT}, 0")
    a("s_nop 0")
    a(f"v_cndmask_b32 v{vQr}, v{vQr}, v{vT}, s[32:33]")
    a("s_nop 1")
    a(f"v_mfma_f32_32x32x8_bf16 {vr(S0,16)}, {vr(vKf[0]+4,2)}, {vr(vQr,2)}, 0")
    a(f"v_mfma_f32_32x32x16_bf16 {vr(S0,16)}, {vr(vKf[0],4)}, {vr(vQm,4)}, {vr(S0,16)}")
    for r in range(4,8): a(f"v_mov_b32 v{vP+r}, 0")
    for r in range(4,8): a(f"v_mov_b32 v{vVf[1]+r}, 0")
    a("s_mov_b32 s24, 0")
    a("s_mov_b32 s25, 0")
    a(f"s_add_u32 s26, s29, {2*CH}")
    a("s_mov_b32 s34, 0")
    a(f"s_mov_b32 s42, {-2*CH}")
    a(f"s_mov_b32 s43, {CH}")
    a("s_nop 7")
    stamp(a,1,prof)
    a("L_att_loop:")
    a("s_cmp_eq_u32 s34, 2")
    a("s_cselect_b32 s28, s42, s43")
    for i in range(8):
        attn_body(a, i)
    a("s_add_u32 s34, s34, 1")
    a("s_cmp_eq_u32 s34, 3")
    a("s_cselect_b32 s34, 0, s34")
    a("s_add_u32 s35, s34, 2")
    a("s_cmp_ge_u32 s35, 3")
    a("s_cselect_b32 s36, 3, 0")
    a("s_sub_u32 s35, s35, s36")
    a(f"s_mul_i32 s35, s35, {CH}")
    a("s_add_u32 s26, s35, s29")
    a(f"s_add_u32 s25, s25, {CH}")
    a("s_add_u32 s24, s24, 1")
    a("s_cmp_lt_u32 s24, 8")
    a("s_cbranch_scc1 L_att_loop")
    stamp(a,2,prof)
    a("s_nop 1")
    a(f"v_mfma_f32_32x32x16_bf16 {vr(vO,16)}, {vr(vVf[1]+4,4)}, {vr(vP+4,4)}, {vr(vO,16)}")
    a("s_waitcnt lgkmcnt(0)")
    a("s_nop 15")
    xhalf(a, vO+8, vT, vT+1)
    lo = "0x1f800000"; hi="0x5f800000"
    if force_slow: hi="0x3f800000"
    a(f"s_mov_b32 s36, {lo}")
    a(f"s_mov_b32 s37, {hi}")
    a(f"v_cmp_gt_f32 vcc, v{vT+1}, s36" if False else f"v_cmp_lt_f32 vcc, s36, v{vT+1}")
    a(f"v_cmp_gt_f32 s[38:39], s37, v{vT+1}")
    a("s_nop 3")
    a("s_and_b64 s[38:39], s[38:39], vcc")
    a("s_cmp_eq_u64 s[38:39], -1")
    a("s_cbranch_scc1 L_att_fin")
    attn_slow(a)
    a("L_att_fin:")
    a(f"v_rcp_f32 v{vT+1}, v{vT+1}")
    a("s_nop 0")
    for r in range(12): a(f"v_mul_f32 v{vO+r}, v{vO+r}, v{vT+1}")
    for p in range(6): a(f"v_cvt_pk_bf16_f32 v{vP+p}, v{vO+2*p}, v{vO+2*p+1}")
    a("s_mov_b32 s36, 32768")
    a("s_mov_b32 s37, 65536")
    a(f"buffer_store_dwordx2 {vr(vP,2)}, v3, s[16:19], 0 offen sc1")
    a(f"buffer_store_dwordx2 {vr(vP+2,2)}, v3, s[16:19], s36 offen sc1")
    a("s_mov_b64 s[40:41], exec")
    a("s_mov_b32 exec_hi, 0")
    a(f"buffer_store_dwordx2 {vr(vP+4,2)}, v3, s[16:19], s37 offen sc1")
    a("s_mov_b64 exec, s[40:41]")
    tl_mid(a,0)
    a("s_waitcnt vmcnt(0) lgkmcnt(0)")
    a("s_barrier")
    a("s_cmp_lg_u32 s23, 0")
    a("s_cbranch_scc1 L_att_nof")
    a("s_lshl_b32 s36, s21, 5")
    a("s_add_u32 s36, s36, s20")
    a("s_lshl_b32 s36, s36, 7")
    a(f"s_add_u32 s36, s36, {WS_FL}")
    a("v_mov_b32 v10, s36")
    a("v_mov_b32 v11, 1")
    a("s_mov_b64 exec, 1")
    a("global_store_dword v10, v11, s[4:5] sc1")
    a("s_mov_b64 exec, s[40:41]")
    a("L_att_nof:")
    if prof:
        kv=prof
        a("s_waitcnt vmcnt(0)")
        stamp(a,3,prof)
        a("s_load_dwordx2 s[44:45], s[0:1], 80")
        a("s_waitcnt lgkmcnt(0)")
        a(f"s_add_u32 s44, s44, {WS_TOP}")
        a("s_addc_u32 s45, s45, 0")
        a(f"s_cmp_lg_u32 s2, {prof-1}")
        a("s_cbranch_scc1 L_att_noprof")
        a("s_mov_b32 s46, 256")
        a("s_mov_b32 s47, 0x00020000")
        a("s_sub_u32 s64, s64, s60"); a("s_sub_u32 s68, s68, s60"); a("s_sub_u32 s72, s72, s60"); a("s_sub_u32 s74, s74, s62")
        a("v_mov_b32 v10, s64"); a("v_mov_b32 v11, s68"); a("v_mov_b32 v12, s72"); a("v_mov_b32 v13, s74")
        a("s_lshl_b32 s48, s23, 4")
        a("v_mov_b32 v14, s48")
        a("s_mov_b64 exec, 1")
        a("buffer_store_dwordx4 v[10:13], v14, s[44:47], 0 offen")
        a("L_att_noprof:")

def attn_slow(a):
    a.c("slow path: exact running max")
    a("v_and_b32 v2, 63, v0")
    a(f"v_and_b32 v{vT}, 31, v2")
    a("v_lshrrev_b32 v1, 5, v2")
    a(f"v_lshlrev_b32 v{vA}, 3, v{vT}")
    a(f"v_lshl_add_u32 v{vA}, v1, 8, v{vA}")
    a(f"v_lshlrev_b32 v{vB}, 3, v{vT}")
    a(f"v_lshl_add_u32 v{vB}, v1, 8, v{vB}")
    a(f"v_add_u32 v{vB}, 1024, v{vB}")
    a(f"v_min_u32 v{vC}, 23, v{vT}")
    a(f"v_lshlrev_b32 v{vC}, 4, v{vC}")
    a(f"v_mul_u32_u24 v{vT+3}, 384, v1")
    a(f"v_add_u32 v{vC}, v{vC}, v{vT+3}")
    a(f"v_add_u32 v{vC}, 1536, v{vC}")
    for r in range(16): a(f"v_mov_b32 v{vO+r}, 0")
    a(f"v_mov_b32 v{vM}, 0xff800000")
    a("s_mov_b32 s25, 0")
    S=vS[0]; K=vKf[0]; V=vVf[0]
    a("L_att_slow:")
    a(f"buffer_load_dwordx2 {vr(K,2)}, v{vA}, s[8:11], s25 offen")
    a(f"buffer_load_dwordx2 {vr(K+2,2)}, v{vA}, s[8:11], s25 offen offset:512")
    a(f"buffer_load_dwordx2 {vr(K+4,2)}, v{vB}, s[8:11], s25 offen")
    a(f"buffer_load_dwordx4 {vr(V,4)}, v{vC}, s[8:11], s25 offen")
    a(f"buffer_load_dwordx4 {vr(V+4,4)}, v{vC}, s[8:11], s25 offen offset:768")
    a("s_waitcnt vmcnt(0)")
    a(f"v_mfma_f32_32x32x8_bf16 {vr(S,16)}, {vr(K+4,2)}, {vr(vQr0,2)}, 0")
    a(f"v_mfma_f32_32x32x16_bf16 {vr(S,16)}, {vr(K,4)}, {vr(vQm,4)}, {vr(S,16)}")
    a("s_nop 15")
    max16(a, S, vT)
    xhalf(a, vT, vT+1, vT+2)
    a(f"v_max3_f32 v{vT}, v{vT+1}, v{vT+2}, v{vM}")
    a(f"v_sub_f32 v{vAl}, v{vM}, v{vT}")
    a(f"v_exp_f32 v{vAl}, v{vAl}")
    a(f"v_mov_b32 v{vM}, v{vT}")
    for r in range(16): a(f"v_sub_f32 v{S+r}, v{S+r}, v{vM}")
    for r in range(16): a(f"v_exp_f32 v{S+r}, v{S+r}")
    for r in range(16): a(f"v_mul_f32 v{vO+r}, v{vO+r}, v{vAl}")
    for p in range(8): a(f"v_cvt_pk_bf16_f32 v{vP+p}, v{S+2*p}, v{S+2*p+1}")
    a("s_nop 1")
    a(f"v_mfma_f32_32x32x16_bf16 {vr(vO,16)}, {vr(V,4)}, {vr(vP,4)}, {vr(vO,16)}")
    a(f"v_mfma_f32_32x32x16_bf16 {vr(vO,16)}, {vr(V+4,4)}, {vr(vP+4,4)}, {vr(vO,16)}")
    a("s_nop 15")
    a("s_nop 3")
    a("s_add_u32 s25, s25, 3072")
    a("s_cmp_lt_u32 s25, 196608")
    a("s_cbranch_scc1 L_att_slow")
    xhalf(a, vO+8, vT, vT+1)
```

```python
WS_QI = 0
WS_KV = 0x300000
WS_H  = 0x900000
WS_O  = 0xF00000
WS_G  = 0x1180000
WS_END= 0x1400000
WS_RS = 0x1400000
WS_CS = 0x1440000
WS_FL = 0x1480000
WS_TOP= 0x1490000

class Asm:
    def __init__(self):
        self.lines=[]
    def __call__(self, s=""):
        for l in s.split("\n"):
            l=l.strip()
            if l=="" : continue
            if l.endswith(":") or l.startswith(".") :
                self.lines.append(l)
            else:
                self.lines.append("    "+l)
    def c(self, s):
        self.lines.append("    ; "+s)
    def text(self):
        return "\n".join(self.lines)+"\n"

def vr(b,n):
    return f"v[{b}:{b+n-1}]" if n>1 else f"v{b}"
def sr(b,n):
    return f"s[{b}:{b+n-1}]" if n>1 else f"s{b}"

def srd(a, d, base_lo, base_hi, off, size, tmp=None):
    a(f"s_add_u32 s{d}, s{base_lo}, {off}")
    a(f"s_addc_u32 s{d+1}, s{base_hi}, 0")
    a(f"s_mov_b32 s{d+2}, {size}")
    a(f"s_mov_b32 s{d+3}, 0x00020000")

def kdesc(name, vgpr, sgpr=102, accum=None):
    if accum is None: accum=(vgpr+3)//4*4
    return f""".amdhsa_kernel {name}
  .amdhsa_next_free_vgpr {vgpr}
  .amdhsa_next_free_sgpr {sgpr}
  .amdhsa_accum_offset {accum}
  .amdhsa_group_segment_fixed_size 0
  .amdhsa_kernarg_size 88
  .amdhsa_user_sgpr_count 2
  .amdhsa_user_sgpr_kernarg_segment_ptr 1
  .amdhsa_system_sgpr_workgroup_id_x 1
.end_amdhsa_kernel
"""

def stamp(a, idx, on, base=70):
    if not on: return
    a(f"s_memtime s[{base+2*idx}:{base+1+2*idx}]")

def prof_out(a, on, n, wave_s, tag, base=70):
    if not on: return
    a("s_waitcnt vmcnt(0) lgkmcnt(0)")
    stamp(a, n, on, base)
    a("s_load_dwordx2 s[92:93], s[0:1], 80")
    a("s_waitcnt lgkmcnt(0)")
    a(f"s_add_u32 s92, s92, {WS_TOP}")
    a("s_addc_u32 s93, s93, 0")
    a(f"s_cmp_lg_u32 s2, {on-1}")
    a(f"s_cbranch_scc1 L_{tag}_noprof")
    a("s_mov_b32 s94, 256")
    a("s_mov_b32 s95, 0x00020000")
    for i in range(1,5):
        if i<=n:
            a(f"s_sub_u32 s{base+2*i}, s{base+2*i}, s{base}")
            a(f"v_mov_b32 v{9+i}, s{base+2*i}")
        else:
            a(f"v_mov_b32 v{9+i}, 0")
    a(f"s_lshl_b32 s96, s{wave_s}, 4")
    a("v_mov_b32 v14, s96")
    a("s_mov_b64 exec, 1")
    a("buffer_store_dwordx4 v[10:13], v14, s[92:95], 0 offen")
    a(f"L_{tag}_noprof:")

TL=[False]
def tl_start(a):
    if not TL[0]: return
    a("s_memrealtime s[98:99]")
def tl_end(a, kidx, tag):
    if not TL[0]: return
    a("s_waitcnt vmcnt(0) lgkmcnt(0)")
    a("s_memrealtime s[100:101]")
    a("s_load_dwordx2 s[92:93], s[0:1], 80")
    a("s_waitcnt lgkmcnt(0)")
    a(f"s_add_u32 s92, s92, {WS_TOP+4096+kidx*65536}")
    a("s_addc_u32 s93, s93, 0")
    a("s_mov_b32 s94, 65536")
    a("s_mov_b32 s95, 0x00020000")
    a("s_mov_b64 exec, -1")
    a("v_lshrrev_b32 v14, 6, v0")
    a("s_lshl_b32 s91, s2, 3")
    a("v_add_u32 v14, s91, v14")
    a("v_lshlrev_b32 v14, 4, v14")
    a("v_mov_b32 v10, s98")
    a("v_mov_b32 v11, s100")
    a("v_mov_b32 v12, s76")
    a("v_mov_b32 v13, s78")
    a("s_mov_b64 exec, 1")
    a("buffer_store_dwordx4 v[10:13], v14, s[92:95], 0 offen")
def tl_mid(a, i):
    if not TL[0]: return
    a(f"s_memrealtime s[{76+2*i}:{77+2*i}]")
```

```python
from common import *
import struct
def f32(x): return "0x%08x" % struct.unpack("<I", struct.pack("<f", x))[0]
QSCALE=(20**-0.5)*1.4426950408889634
XSTG=16384

class G:
    def __init__(s, tag, NC, RING, base_v):
        s.tag=tag; s.NC=NC; s.RING=RING
        s.WP=64*NC
        s.WSTG=64*s.WP
        s.swz=(NC==4)
        s.WOFF=RING*XSTG
        s.L_ROWA=s.WOFF+RING*s.WSTG; s.L_ROWB=s.L_ROWA+512; s.L_CS=s.L_ROWB+512; s.L_BIAS=s.L_CS+512
        s.LDS=s.L_BIAS+512
        s.nW=s.WSTG//1024
        s.vH=1; s.vLn=2; s.vL31=3
        s.vDma=4
        s.vB=8
        s.vXa=12
        s.vSt=16
        s.vBias=22
        s.vT=24
        s.vAcc=44
        s.vAf=76
        s.vBf=84
        s.vSL=100
        s.vE=76
        s.vPR=base_v
    def nslots(s,j): return 2 if (s.NC==4 or j==0) else 1
    def nwd(s,j):
        return 2 if (s.NC==4 or j==0) else 1
    def nd(s,j): return 2+s.nwd(j)

    def bread(s,a,dst,buf,t,k):
        off=buf*s.WSTG+(16*t)*s.WP
        for half in range(2):
            o=off+half*4*s.WP
            base=s.vB+k
            if o>=32768 and s.RING>2: base=s.vB+2+k; o-=32768
            a(f"ds_read_b64_tr_b16 {vr(dst+2*half,2)}, v{base} offset:{o}")
    def aread(s,a,dst,buf,t):
        a(f"ds_read_b128 {vr(dst,4)}, v{s.vXa+t} offset:{buf*XSTG}")
    def dma(s,a,st,j):
        a(f"s_mul_i32 s34, s33, {st}")
        a(f"s_mov_b32 s48, {st*128}")
        b=st%s.RING
        for q in range(2):
            a(f"s_add_u32 m0, s49, {b*XSTG+q*1024}")
            a("s_nop 0")
            a(f"buffer_load_dwordx4 v{s.vDma+2+q}, s[8:11], s48 offen lds")
        for q in range(s.nwd(j)):
            a(f"s_add_u32 m0, s{28+q}, {s.WOFF+b*s.WSTG}")
            a("s_nop 0")
            a(f"buffer_load_dwordx4 v{s.vDma+q}, s[12:15], s34 offen lds")

    def lane_setup(s,a):
        T=s.vT
        for q in range(2):
            a(f"s_add_u32 s37, s23, {8*q}")
            a(f"s_min_u32 s37, s37, {s.nW-1}")
            a(f"s_lshl_b32 s{28+q}, s37, 10")
            a(f"v_lshl_add_u32 v{T}, v{s.vLn}, 4, s{28+q}")
            if s.NC==4:
                a(f"v_lshrrev_b32 v{T+1}, 8, v{T}")
                a(f"v_bfe_u32 v{T+2}, v{T}, 4, 4")
                a(f"v_and_b32 v{T+3}, 3, v{T+1}")
                a(f"v_lshlrev_b32 v{T+3}, 2, v{T+3}")
                a(f"v_xor_b32 v{T+2}, v{T+2}, v{T+3}")
                a(f"v_lshlrev_b32 v{T+2}, 4, v{T+2}")
            else:
                a(f"v_lshrrev_b32 v{T+1}, 6, v{T}")
                a(f"v_mul_u32_u24 v{T+1}, 21846, v{T+1}")
                a(f"v_lshrrev_b32 v{T+1}, 16, v{T+1}")
                a(f"v_mul_u32_u24 v{T+2}, 192, v{T+1}")
                a(f"v_sub_u32 v{T+2}, v{T}, v{T+2}")
            a(f"v_mul_lo_u32 v{T+1}, v{T+1}, s26")
            a(f"s_lshl_b32 s37, s27, 1")
            a(f"v_add3_u32 v{s.vDma+q}, v{T+1}, v{T+2}, s37")
        a("s_lshl_b32 s49, s23, 11")
        for q in range(2):
            a(f"s_lshl_b32 s37, s23, 4")
            a(f"s_add_u32 s37, s37, {8*q}")
            a(f"v_lshrrev_b32 v{T}, 3, v{s.vLn}")
            a(f"v_add_u32 v{T}, s37, v{T}")
            a(f"v_bfe_u32 v{T+1}, v{T}, 1, 3")
            a(f"v_and_b32 v{T+2}, 7, v{s.vLn}")
            a(f"v_xor_b32 v{T+1}, v{T+1}, v{T+2}")
            a("s_lshl_b32 s38, s20, 7")
            a(f"v_add_u32 v{T}, s38, v{T}")
            a(f"v_mul_u32_u24 v{T}, 1280, v{T}")
            a(f"v_lshl_add_u32 v{s.vDma+2+q}, v{T+1}, 4, v{T}")
        a("s_lshl_b32 s33, s26, 6")
        a("s_lshl_b32 s37, s25, 1")
        a("s_and_b32 s38, s24, 1")
        if s.NC==3:
            a("s_cmp_eq_u32 s25, 0")
            a("s_cselect_b32 s38, s38, 0")
        a("s_add_u32 s40, s37, s38")
        a("s_xor_b32 s41, s40, 1")
    def setup2(s,a):
        T=s.vT
        a("s_lshl_b32 s37, s24, 5")
        a(f"v_add_u32 v{T}, s37, v{s.vL31}")
        a(f"v_bfe_u32 v{T+1}, v{T}, 1, 3")
        a(f"v_lshlrev_b32 v{T}, 7, v{T}")
        for t in range(4):
            a(f"v_add_u32 v{T+2}, {2*t}, v{s.vH}")
            a(f"v_xor_b32 v{T+2}, v{T+2}, v{T+1}")
            a(f"v_lshl_add_u32 v{s.vXa+t}, v{T+2}, 4, v{T}")
        a(f"v_bfe_u32 v{T}, v{s.vLn}, 2, 2")
        a(f"v_lshl_add_u32 v{T+3}, v{s.vH}, 3, v{T}")
        a(f"v_mul_u32_u24 v{T+3}, {s.WP}, v{T+3}")
        a(f"v_and_b32 v{T+1}, 3, v{s.vLn}")
        a(f"v_lshl_add_u32 v{T+3}, v{T+1}, 3, v{T+3}")
        a(f"v_bfe_u32 v{T+1}, v{s.vLn}, 4, 1")
        a(f"v_lshl_add_u32 v{T+3}, v{T+1}, 5, v{T+3}")
        for k in range(2):
            if s.swz:
                a(f"v_xor_b32 v{T+2}, s{40+k}, v{T}")
                a(f"v_lshl_add_u32 v{s.vB+k}, v{T+2}, 6, v{T+3}")
                a(f"v_add_u32 v{s.vB+k}, {s.WOFF}, v{s.vB+k}")
            else:
                a(f"s_lshl_b32 s37, s{40+k}, 6")
                a(f"s_add_u32 s37, s37, {s.WOFF}")
                a(f"v_add_u32 v{s.vB+k}, s37, v{T+3}")
            a(f"v_add_u32 v{s.vB+2+k}, 32768, v{s.vB+k}")

    def loop(s,a,j,cform,hooks):
        nt=s.nslots(j); nd=s.nd(j); R=s.RING
        def fb(p,k): return s.vBf+8*p+4*k
        for st in range(R): s.dma(a,st,j)
        hooks['pre'](a)
        s.setup2(a)
        hooks['wait'](a,-1,(R-1)*nd)
        a("s_barrier")
        s.aread(a,s.vAf,0,0)
        for k in range(nt): s.bread(a,fb(0,k),0,0,k)
        step=0
        for st in range(10):
            for t in range(4):
                p=step%2
                a("s_waitcnt lgkmcnt(0)")
                if t==3 and st<9:
                    inflight=min(R-2, 10-(st+2)) if st+2<10 else 0
                    inflight=max(0,min(R-2, 9-(st+1)))
                    hooks['wait'](a,st,inflight*nd)
                    hooks['preb'](a,st)
                    a("s_barrier")
                    hooks['postb0'](a,st)
                    if st+R<10: s.dma(a,st+R,j)
                    hooks['postb'](a,st)
                if t<3:
                    s.aread(a,s.vAf+4*(1-p),st%R,t+1)
                    for k in range(nt): s.bread(a,fb(1-p,k),st%R,t+1,k)
                elif st<9:
                    s.aread(a,s.vAf+4*(1-p),(st+1)%R,0)
                    for k in range(nt): s.bread(a,fb(1-p,k),(st+1)%R,0,k)
                Af=s.vAf+4*p
                for k in range(nt):
                    acc=s.vAcc+16*k
                    C="0" if step==0 else vr(acc,16)
                    if cform: a(f"v_mfma_f32_32x32x16_bf16 {vr(acc,16)}, {vr(Af,4)}, {vr(fb(p,k),4)}, {C}")
                    else:     a(f"v_mfma_f32_32x32x16_bf16 {vr(acc,16)}, {vr(fb(p,k),4)}, {vr(Af,4)}, {C}")
                step+=1

    def xsum(s,a,src,t0,t1):
        a(f"v_mov_b32 v{t0}, v{src}")
        a(f"v_mov_b32 v{t1}, v{src}")
        a("s_nop 1")
        a(f"v_permlane32_swap_b32 v{t0}, v{t1}")
        a("s_nop 1")
        a(f"v_add_f32 v{src}, v{t0}, v{t1}")
    def bfr(s,a,v):
        a(f"v_cvt_pk_bf16_f32 v{v}, v{v}, v{v}")
        a(f"v_and_b32 v{v}, 0xffff0000, v{v}")

    def rowparams(s,a,mlp):
        T=s.vT; tag=s.tag
        a(f"v_mov_b32 v{T}, v{s.vSL}")
        a(f"v_mov_b32 v{T+1}, v{s.vSL+1}")
        a(f"v_mov_b32 v{T+2}, v{T}"); s.bfr(a,T+2)
        a(f"v_mov_b32 v{T+3}, v{T+1}"); s.bfr(a,T+3)
        a(f"v_add_f32 v{T+3}, {f32(1e-5)}, v{T+3}"); s.bfr(a,T+3)
        a(f"v_sqrt_f32 v{T+3}, v{T+3}"); a("s_nop 0"); s.bfr(a,T+3)
        a(f"v_rcp_f32 v{T+4}, v{T+3}"); a("s_nop 0")
        a(f"v_mul_f32 v{T+5}, v{T+2}, v{T+4}")
        if not mlp:
            a("s_cmp_eq_u32 s22, 0")
            a(f"s_cbranch_scc0 L_{tag}_rs_nq")
            a(f"v_mul_f32 v{T+4}, {f32(QSCALE)}, v{T+4}")
            a(f"v_mul_f32 v{T+5}, {f32(QSCALE)}, v{T+5}")
            a(f"L_{tag}_rs_nq:")
        else:
            a(f"v_sub_f32 v{T+6}, v{T}, v{T+2}")
            a(f"v_mul_f32 v{T+6}, v{T+6}, v{T+4}"); s.bfr(a,T+6)
            a(f"v_mul_f32 v{T+7}, v{T+1}, v{T+4}")
            a(f"v_mul_f32 v{T+7}, v{T+7}, v{T+4}"); s.bfr(a,T+7)
            a(f"v_add_f32 v{T+7}, {f32(1e-5)}, v{T+7}"); s.bfr(a,T+7)
            a(f"v_sqrt_f32 v{T+7}, v{T+7}"); a("s_nop 0"); s.bfr(a,T+7)
            a(f"v_rcp_f32 v{T+7}, v{T+7}"); a("s_nop 0")
            a(f"v_add_f32 v{T+5}, v{T+5}, v{T+6}")
            a(f"v_mul_f32 v{T+5}, v{T+5}, v{T+7}")
            a(f"v_mul_f32 v{T+4}, v{T+4}, v{T+7}")
        a(f"s_lshl_b32 s37, s24, 7")
        a(f"s_add_u32 s37, s37, {s.L_ROWA}")
        a(f"v_lshl_add_u32 v{T+6}, v{s.vL31}, 2, s37")
        a(f"ds_write_b32 v{T+6}, v{T+4}")
        a(f"ds_write_b32 v{T+6}, v{T+5} offset:512")
    def colparams(s,a,mlp):
        T=s.vT
        a(f"v_add_f32 v{s.vSt+4}, v{s.vSL+4}, v{s.vSL+5}")
        for r in range(2,8): a(f"v_add_f32 v{s.vSt+4}, v{s.vSt+4}, v{s.vSL+4+r}")
        s.xsum(a,s.vSt+4,T,T+1)
        a(f"s_lshl_b32 s37, s40, 7")
        a(f"s_add_u32 s37, s37, {s.L_CS}")
        a(f"v_lshl_add_u32 v{T+6}, v{s.vL31}, 2, s37")
        a(f"ds_write_b32 v{T+6}, v{s.vSt+4}")
        if mlp:
            a(f"v_lshlrev_b32 v{s.vBias}, 16, v{s.vBias}")
            a(f"ds_write_b32 v{T+6}, v{s.vBias} offset:512")
    def statloads(s,a,j,csoff,cspitch,sc):
        T=s.vT
        if j==1:
            a("s_lshl_b32 s37, s20, 7")
            a("s_lshl_b32 s38, s24, 5")
            a("s_add_u32 s37, s37, s38")
            a("s_lshl_b32 s37, s37, 7")
            a(f"v_lshlrev_b32 v{T}, 7, v{s.vL31}")
            a(f"buffer_load_dwordx4 {vr(s.vSL,4)}, v{T}, s[84:87], s37 offen{sc}")
        a("s_lshl_b32 s38, s40, 7")
        a(f"s_add_u32 s37, {csoff}, s38")
        a(f"v_lshlrev_b32 v{T+1}, 2, v{s.vL31}")
        a(f"v_mul_u32_u24 v{T+2}, {8*cspitch}, v{s.vH}")
        a(f"v_add_u32 v{T+1}, v{T+1}, v{T+2}")
        for r in range(8):
            a(f"buffer_load_dword v{s.vSL+4+r}, v{T+1}, s[84:87], s37 offen{sc}")
            if r<7: a(f"s_add_u32 s37, s37, {cspitch}")

    def gelu_pair(s,a,u,t):
        a(f"v_pk_mul_f32 {vr(t,2)}, {vr(u,2)}, {vr(u,2)}")
        a(f"v_pk_fma_f32 {vr(t,2)}, {vr(t,2)}, s[50:51], {vr(s.vT+16,2)}")
        a(f"v_pk_mul_f32 {vr(t,2)}, {vr(t,2)}, {vr(u,2)}")
        a(f"v_exp_f32 v{t}, v{t}")
        a(f"v_exp_f32 v{t+1}, v{t+1}")
        a("s_nop 0")
        a(f"v_pk_add_f32 {vr(t,2)}, {vr(t,2)}, 1.0 op_sel_hi:[1,0]")
        a(f"v_rcp_f32 v{t}, v{t}")
        a(f"v_rcp_f32 v{t+1}, v{t+1}")
        a("s_nop 0")
        a(f"v_pk_mul_f32 {vr(u,2)}, {vr(u,2)}, {vr(t,2)}")

    def epi_ct(s,a,j,typ,sc=""):
        nt=s.nslots(j); T=s.vT; tag=f"L_{s.tag}_e{typ}{j}"
        Al=T; Be=T+2
        a(f"s_lshl_b32 s37, s24, 7")
        a(f"s_add_u32 s37, s37, {s.L_ROWA}")
        a(f"v_lshl_add_u32 v{T+4}, v{s.vL31}, 2, s37")
        a(f"ds_read_b32 v{Al}, v{T+4}")
        a(f"ds_read_b32 v{Be}, v{T+4} offset:512")
        a(f"s_lshl_b32 s38, s20, 7")
        a(f"s_lshl_b32 s39, s24, 5")
        a(f"s_add_u32 s38, s38, s39")
        a(f"v_add_u32 v{T+5}, s38, v{s.vL31}")
        if typ==0:
            a(f"v_lshlrev_b32 v{T+6}, 3, v{T+5}")
            a(f"v_lshl_add_u32 v{T+6}, v{s.vH}, 14, v{T+6}")
        elif typ==1:
            a(f"s_lshr_b32 s39, s38, 5")
            a(f"s_mul_i32 s39, s39, 3072")
            a(f"v_lshl_add_u32 v{T+6}, v{s.vL31}, 3, s39")
            a(f"v_mov_b32 v{T+18}, 0x3f80")
            a(f"v_mov_b32 v{T+19}, 0")
        else:
            a(f"v_lshlrev_b32 v{T+6}, 3, v{T+5}")
            a(f"v_lshl_add_u32 v{T+6}, v{s.vH}, 14, v{T+6}")
            c1=-2.0*0.7978845608028654*1.4426950408889634
            c2=c1*0.044715
            a(f"s_mov_b32 s50, {f32(c2)}"); a(f"s_mov_b32 s51, {f32(c2)}")
            a(f"v_mov_b32 v{T+16}, {f32(c1)}"); a(f"v_mov_b32 v{T+17}, {f32(c1)}")
        a(f"v_lshlrev_b32 v{T+8}, 4, v{s.vH}")
        a(f"v_add_u32 v{T+8}, {s.L_CS}, v{T+8}")
        CS=s.vE
        for k in range(nt):
            a(f"s_lshl_b32 s37, s{40+k}, 7")
            a(f"v_add_u32 v{T+9}, s37, v{T+8}")
            for g in range(4): a(f"ds_read_b128 {vr(CS+4*g,4)}, v{T+9} offset:{32*g}")
            if typ==3:
                for g in range(4): a(f"ds_read_b128 {vr(CS+16+4*g,4)}, v{T+9} offset:{512+32*g}")
            a("s_waitcnt lgkmcnt(0)")
            acc=s.vAcc+16*k
            for pr in range(8):
                c=CS+2*pr; u=acc+2*pr
                if typ==3:
                    a(f"v_pk_fma_f32 {vr(c,2)}, {vr(c,2)}, {vr(Be,2)}, {vr(c+16,2)} op_sel_hi:[1,0,1] neg_lo:[0,0,1] neg_hi:[0,0,1]")
                else:
                    a(f"v_pk_mul_f32 {vr(c,2)}, {vr(c,2)}, {vr(Be,2)} op_sel_hi:[1,0]")
                a(f"v_pk_fma_f32 {vr(u,2)}, {vr(u,2)}, {vr(Al,2)}, {vr(c,2)} op_sel_hi:[1,0,1] neg_lo:[0,0,1] neg_hi:[0,0,1]")
            if typ==3:
                for pr in range(8): s.gelu_pair(a, acc+2*pr, T+10+2*(pr%2))
            PK=CS+32
            for pr in range(8): a(f"v_cvt_pk_bf16_f32 v{PK+pr}, v{acc+2*pr}, v{acc+2*pr+1}")
            if typ in (0,3):
                a(f"s_lshl_b32 s37, s{40+k}, 3")
                a(f"s_add_u32 s37, s37, s35")
                a(f"s_lshl_b32 s37, s37, 14")
                for g in range(4):
                    a(f"buffer_store_dwordx2 {vr(PK+2*g,2)}, v{T+6}, s[16:19], s37 offen{sc}")
                    if g<3: a(f"s_add_u32 s37, s37, 32768")
            else:
                a(f"s_lshl_b32 s39, s{40+k}, 3")
                a(f"s_add_u32 s37, s35, s39")
                for g in range(4):
                    a(f"v_add_u32 v{T+10}, s37, v{s.vH}")
                    if g: a(f"v_add_u32 v{T+10}, {2*g}, v{T+10}")
                    a(f"v_mul_u32_u24 v{T+11}, 205, v{T+10}")
                    a(f"v_lshrrev_b32 v{T+11}, 10, v{T+11}")
                    a(f"v_mul_u32_u24 v{T+12}, 5, v{T+11}")
                    a(f"v_sub_u32 v{T+12}, v{T+10}, v{T+12}")
                    a(f"v_mul_u32_u24 v{T+13}, 0x30000, v{T+11}")
                    a(f"v_lshl_add_u32 v{T+13}, v{T+12}, 8, v{T+13}")
                    a(f"v_add_u32 v{T+13}, v{T+13}, v{T+6}")
                    a(f"v_cmp_eq_u32 vcc, 4, v{T+12}")
                    a(f"buffer_store_dwordx2 {vr(PK+2*g,2)}, v{T+13}, s[16:19], 0 offen")
                    a("s_and_saveexec_b64 s[54:55], vcc")
                    a(f"s_cbranch_execz {tag}_nc{k}{g}")
                    a(f"buffer_store_dwordx2 {vr(T+18,2)}, v{T+13}, s[16:19], 0 offen offset:256")
                    a(f"{tag}_nc{k}{g}:")
                    a("s_mov_b64 exec, s[54:55]")

    def epi_v(s,a,j):
        nt=s.nslots(j); T=s.vT; tag=f"L_{s.tag}_e2{j}"
        AL=s.vE; BE=s.vE+16; P=s.vE+32
        a(f"s_lshl_b32 s37, s24, 7")
        a(f"s_add_u32 s37, s37, {s.L_ROWA}")
        a(f"v_lshl_add_u32 v{T+4}, v{s.vH}, 4, s37")
        for g in range(4):
            a(f"ds_read_b128 {vr(AL+4*g,4)}, v{T+4} offset:{32*g}")
            a(f"ds_read_b128 {vr(BE+4*g,4)}, v{T+4} offset:{512+32*g}")
        a(f"s_lshl_b32 s38, s20, 2")
        a(f"s_add_u32 s38, s38, s24")
        a(f"s_mul_i32 s38, s38, 3072")
        a(f"s_add_u32 s38, s38, 1536")
        a(f"v_mul_u32_u24 v{T+5}, 384, v{s.vH}")
        a(f"v_add_u32 v{T+5}, s38, v{T+5}")
        a(f"v_lshlrev_b32 v{T+8}, 2, v{s.vL31}")
        a(f"v_add_u32 v{T+8}, {s.L_CS}, v{T+8}")
        for k in range(nt):
            a(f"s_lshl_b32 s37, s{40+k}, 7")
            a(f"v_add_u32 v{T+9}, s37, v{T+8}")
            a(f"ds_read_b32 v{T}, v{T+9}")
            a(f"s_lshl_b32 s37, s35, 2")
            a(f"s_lshl_b32 s39, s{40+k}, 5")
            a(f"s_add_u32 s37, s37, s39")
            a(f"v_add_u32 v{T+10}, s37, v{s.vL31}")
            a(f"v_mul_u32_u24 v{T+11}, 3277, v{T+10}")
            a(f"v_lshrrev_b32 v{T+11}, 16, v{T+11}")
            a(f"v_mul_u32_u24 v{T+12}, 20, v{T+11}")
            a(f"v_sub_u32 v{T+12}, v{T+10}, v{T+12}")
            a(f"v_mul_u32_u24 v{T+13}, 0x30000, v{T+11}")
            a(f"v_lshl_add_u32 v{T+13}, v{T+12}, 4, v{T+13}")
            a(f"v_add_u32 v{T+13}, v{T+13}, v{T+5}")
            a("s_waitcnt lgkmcnt(0)")
            acc=s.vAcc+16*k
            for pr in range(8):
                u=acc+2*pr
                a(f"v_pk_mul_f32 {vr(T+2,2)}, {vr(BE+2*pr,2)}, {vr(T,2)} op_sel_hi:[1,0]")
                a(f"v_pk_fma_f32 {vr(u,2)}, {vr(u,2)}, {vr(AL+2*pr,2)}, {vr(T+2,2)} neg_lo:[0,0,1] neg_hi:[0,0,1]")
            for pr in range(8): a(f"v_cvt_pk_bf16_f32 v{P+pr}, v{acc+2*pr}, v{acc+2*pr+1}")
            a(f"buffer_store_dwordx4 {vr(P,4)}, v{T+13}, s[16:19], 0 offen")
            a(f"buffer_store_dwordx4 {vr(P+4,4)}, v{T+13}, s[16:19], 0 offen offset:768")
            a(f"v_cmp_eq_u32 vcc, 0, v{T+12}")
            a(f"v_mov_b32 v{T+14}, 0x3f803f80")
            a("s_nop 0")
            for r in range(4): a(f"v_cndmask_b32 v{P+8+r}, 0, v{T+14}, vcc")
            a(f"v_cmp_gt_u32 vcc, 4, v{T+12}")
            a("s_and_saveexec_b64 s[54:55], vcc")
            a(f"s_cbranch_execz {tag}_nc{k}")
            a(f"buffer_store_dwordx4 {vr(P+8,4)}, v{T+13}, s[16:19], 0 offen offset:320")
            a(f"buffer_store_dwordx4 {vr(P+8,4)}, v{T+13}, s[16:19], 0 offen offset:1088")
            a(f"{tag}_nc{k}:")
            a("s_mov_b64 exec, s[54:55]")
            a("s_nop 1")
```

```python
from common import *
import struct
def f32(x): return "0x%08x" % struct.unpack("<I", struct.pack("<f", x))[0]

STG=28672
XSTG=16384
WOFF=3*XSTG
L_ROWA=WOFF+3*STG; L_ROWB=L_ROWA+512; L_CS=L_ROWB+512; L_BIAS=L_CS+1024
L_SCR=L_BIAS+1024
L_EX=L_SCR+2048
K1_LDS=L_EX+2048
vH=1; vLn=2; vL31=3
vDma=4
vXa=104
vAf=108
vB0=184; vB1=188
vSt=12
vBias=18
vT=20
vAcc=40
vA=116
vBf=152
vPR=192
K1_VGPR=252
QSCALE=(20**-0.5)*1.4426950408889634

def bread(a, dst, buf, t, k):
    off=buf*STG + (16*t)*448
    for half in range(2):
        o=off+half*4*448
        base=vB0+k
        if o>=57344: base=vB1+k; o-=57344
        a(f"ds_read_b64_tr_b16 {vr(dst+2*half,2)}, v{base} offset:{o}")

def aread(a, dst, buf, t):
    a(f"ds_read_b128 {vr(dst,4)}, v{vXa+t} offset:{buf*XSTG}")
def dma_items(s, j):
    it=[]
    for q in range(2):
        it.append([f"s_mov_b32 s48, {s*128}", f"s_add_u32 m0, s49, {(s%3)*XSTG+q*1024}", "s_nop 0", f"buffer_load_dwordx4 v{vDma+4+q}, s[8:11], s48 offen lds"])
    for q in range(4-j):
        it.append([f"s_mul_i32 s34, s33, {s}", f"s_add_u32 m0, s{28+q}, {WOFF+(s%3)*STG}", "s_nop 0", f"buffer_load_dwordx4 v{vDma+q}, s[12:15], s34 offen lds"])
    return it
def issue_DMA(a, s, j):
    for it in dma_items(s,j):
        for l in it: a(l)

vRS=192; vCSa=200; vSel=204; vOne=204
PROF=[0]; DET=[0]
def det(a,i):
    if DET[0]:
        a("s_memtime s[90:91]")
        a("s_waitcnt lgkmcnt(0)")
        a(f"v_writelane_b32 v250, s90, {i}")
def sm(a, acc, A, B, first):
    C="0" if first else vr(acc,4)
    a(f"v_mfma_f32_4x4x4_16b_bf16 {vr(acc,4)}, {vr(A,2)}, {vr(B,2)}, {C}")
def mainloop(a, j, cform, tag, force_fb=False):
    nt=4 if j==0 else 3
    nd=6-j
    def fb(p,k): return vBf+16*p+4*k
    for s in range(2): issue_DMA(a,s,j)
    setup2(a)
    a(f"s_waitcnt vmcnt({nd})")
    a("s_barrier")
    det(a,1)
    pend=dma_items(2,j)
    aread(a, vAf, 0, 0)
    for k in range(nt): bread(a, fb(0,k), 0, 0, k)
    step=0
    for s in range(10):
        for t in range(4):
            p=step%2
            a("s_waitcnt lgkmcnt(0)")
            if t==3 and s<9:
                a(f"s_waitcnt vmcnt({nd if s<8 else 0})")
                a("s_barrier")
                det(a,s+2)
                assert not pend
                if s+3<10: pend=dma_items(s+3,j)
            if t<3:
                aread(a, vAf+4*(1-p), s%3, t+1)
                for k in range(nt): bread(a, fb(1-p,k), s%3, t+1, k)
            elif s<9:
                aread(a, vAf+4*(1-p), (s+1)%3, 0)
                for k in range(nt): bread(a, fb(1-p,k), (s+1)%3, 0, k)
            Af=vAf+4*p
            f0=(step==0)
            for k in range(nt):
                acc=vAcc+16*k
                C = "0" if step==0 else vr(acc,16)
                if cform: a(f"v_mfma_f32_32x32x16_bf16 {vr(acc,16)}, {vr(Af,4)}, {vr(fb(p,k),4)}, {C}")
                else:     a(f"v_mfma_f32_32x32x16_bf16 {vr(acc,16)}, {vr(fb(p,k),4)}, {vr(Af,4)}, {C}")
                B0=fb(p,0)
                if k==0:
                    Cc="0" if f0 else vr(vCSa,4)
                    a(f"v_mfma_f32_16x16x32_bf16 {vr(vCSa,4)}, {vr(B0,4)}, {vr(vSel,4)}, {Cc}")
                rr={0:{1:[0],2:[1]},1:{1:[2],2:[3]}}[j].get(k,[])
                for r in rr:
                    t0=vRS+4+2*(r&1)
                    a(f"v_lshlrev_b32 v{t0}, 16, v{Af+r}")
                    a(f"v_and_b32 v{t0+1}, 0xffff0000, v{Af+r}")
                    a(f"v_add_f32 v{vRS}, v{vRS}, v{t0}")
                    a(f"v_add_f32 v{vRS+1}, v{vRS+1}, v{t0+1}")
                    a(f"v_fmac_f32 v{vRS+2}, v{t0}, v{t0}")
                    a(f"v_fmac_f32 v{vRS+3}, v{t0+1}, v{t0+1}")
                if k in (1, nt-1) and pend:
                    for l in pend.pop(0): a(l)
            step+=1

def diag(a, acc, dst):
    a(f"v_and_b32 v{vT+10}, 3, v{vLn}")
    a(f"v_mov_b32 v{dst}, v{acc}")
    for r in range(1,4):
        a(f"v_cmp_eq_u32 vcc, {r}, v{vT+10}")
        a("s_nop 1")
        a(f"v_cndmask_b32 v{dst}, v{dst}, v{acc+r}, vcc")

def xsum(a, src, t0, t1):
    a(f"v_mov_b32 v{t0}, v{src}")
    a(f"v_mov_b32 v{t1}, v{src}")
    a("s_nop 1")
    a(f"v_permlane32_swap_b32 v{t0}, v{t1}")
    a("s_nop 1")
    a(f"v_add_f32 v{src}, v{t0}, v{t1}")

def bfr(a, v, tmp=None):
    a(f"v_cvt_pk_bf16_f32 v{v}, v{v}, v{v}")
    a(f"v_and_b32 v{v}, 0xffff0000, v{v}")

def rowstats(a):
    T=vT
    a(f"v_mul_f32 v{T}, {f32(1.0/640)}, v{vSt}")
    a(f"v_mul_f32 v{T+1}, {f32(1.0/640)}, v{vSt+2}")
    a(f"v_fma_f32 v{T+1}, -v{T}, v{T}, v{T+1}")
    a(f"v_max_f32 v{T+1}, 0, v{T+1}")
    a(f"v_mov_b32 v{T+2}, v{T}"); bfr(a,T+2)
    a(f"v_mov_b32 v{T+3}, v{T+1}"); bfr(a,T+3)
    a(f"v_add_f32 v{T+3}, {f32(1e-5)}, v{T+3}"); bfr(a,T+3)
    a(f"v_sqrt_f32 v{T+3}, v{T+3}"); a("s_nop 0"); bfr(a,T+3)
    a(f"v_rcp_f32 v{T+4}, v{T+3}"); a("s_nop 0")
    a(f"v_mul_f32 v{T+5}, v{T+2}, v{T+4}")
    a("s_cmp_eq_u32 s22, 0")
    a("s_cbranch_scc0 L_k1_rs_nq")
    a(f"v_mul_f32 v{T+4}, {f32(QSCALE)}, v{T+4}")
    a(f"v_mul_f32 v{T+5}, {f32(QSCALE)}, v{T+5}")
    a("L_k1_rs_nq:")
    a("s_cmp_eq_u32 s22, 3")
    a("s_cbranch_scc0 L_k1_rs_nm")
    a(f"v_sub_f32 v{T+6}, v{T}, v{T+2}")
    a(f"v_mul_f32 v{T+6}, v{T+6}, v{T+4}"); bfr(a,T+6)
    a(f"v_mul_f32 v{T+7}, v{T+1}, v{T+4}")
    a(f"v_mul_f32 v{T+7}, v{T+7}, v{T+4}"); bfr(a,T+7)
    a(f"v_add_f32 v{T+7}, {f32(1e-5)}, v{T+7}"); bfr(a,T+7)
    a(f"v_sqrt_f32 v{T+7}, v{T+7}"); a("s_nop 0"); bfr(a,T+7)
    a(f"v_rcp_f32 v{T+7}, v{T+7}"); a("s_nop 0")
    a(f"v_add_f32 v{T+5}, v{T+5}, v{T+6}")
    a(f"v_mul_f32 v{T+5}, v{T+5}, v{T+7}")
    a(f"v_mul_f32 v{T+4}, v{T+4}, v{T+7}")
    a("L_k1_rs_nm:")
    a(f"s_lshl_b32 s37, s24, 7")
    a(f"v_lshl_add_u32 v{T+6}, v{vL31}, 2, s37")
    a(f"ds_write_b32 v{T+6}, v{T+4} offset:{L_ROWA}") if L_ROWA<65536 else None
    if L_ROWA>=65536:
        a(f"v_add_u32 v{T+6}, {L_ROWA}, v{T+6}")
        a(f"ds_write_b32 v{T+6}, v{T+4}")
        a(f"ds_write_b32 v{T+6}, v{T+5} offset:512")

def colstats(a):
    T=vT
    a(f"s_lshl_b32 s37, s23, 8")
    a(f"s_add_u32 s37, s37, {L_SCR}")
    a(f"v_and_b32 v{T}, 15, v{vLn}")
    a(f"v_lshrrev_b32 v{T+1}, 4, v{vLn}")
    a(f"v_lshlrev_b32 v{T+2}, 6, v{T}")
    a(f"v_lshl_add_u32 v{T+2}, v{T+1}, 4, v{T+2}")
    a(f"v_add_u32 v{T+2}, s37, v{T+2}")
    a(f"v_cmp_gt_u32 vcc, 4, v{T}")
    a("s_and_saveexec_b64 s[54:55], vcc")
    a(f"ds_write_b128 v{T+2}, {vr(vCSa,4)}")
    a("s_mov_b64 exec, s[54:55]")
    a(f"v_lshl_add_u32 v{T+2}, v{vL31}, 2, s37")
    a("s_waitcnt lgkmcnt(0)")
    a(f"ds_read_b32 v{T}, v{T+2}")
    a(f"ds_read_b32 v{T+1}, v{T+2} offset:128")
    a("s_waitcnt lgkmcnt(0)")
    a(f"v_add_f32 v{vSt+4}, v{T}, v{T+1}")
    a(f"s_lshl_b32 s37, s40, 7")
    a(f"s_add_u32 s37, s37, {L_CS}")
    a(f"v_lshl_add_u32 v{T+6}, v{vL31}, 2, s37")
    a(f"ds_write_b32 v{T+6}, v{vSt+4}")
    a(f"v_lshlrev_b32 v{vBias}, 16, v{vBias}")
    a(f"ds_write_b32 v{T+6}, v{vBias} offset:1024")

def gelu_pair(a, u, t):
    c1=-2.0*0.7978845608028654*1.4426950408889634
    c2=c1*0.044715
    a(f"v_pk_mul_f32 {vr(t,2)}, {vr(u,2)}, {vr(u,2)}")
    a(f"v_pk_fma_f32 {vr(t,2)}, {vr(t,2)}, s[50:51], {vr(vT+16,2)}")
    a(f"v_pk_mul_f32 {vr(t,2)}, {vr(t,2)}, {vr(u,2)}")
    a(f"v_exp_f32 v{t}, v{t}")
    a(f"v_exp_f32 v{t+1}, v{t+1}")
    a("s_nop 0")
    a(f"v_pk_add_f32 {vr(t,2)}, {vr(t,2)}, 1.0 op_sel_hi:[1,0]")
    a(f"v_rcp_f32 v{t}, v{t}")
    a(f"v_rcp_f32 v{t+1}, v{t+1}")
    a("s_nop 0")
    a(f"v_pk_mul_f32 {vr(u,2)}, {vr(u,2)}, {vr(t,2)}")

def epi_ct(a, j, typ):
    nt=4 if j==0 else 3
    T=vT; tag=f"L_k1_e{typ}{j}"
    Al=T; Be=T+2
    a(f"s_lshl_b32 s37, s24, 7")
    a(f"s_add_u32 s37, s37, {L_ROWA}")
    a(f"v_lshl_add_u32 v{T+4}, v{vL31}, 2, s37")
    a(f"ds_read_b32 v{Al}, v{T+4}")
    a(f"ds_read_b32 v{Be}, v{T+4} offset:512")
    a(f"s_lshl_b32 s38, s20, 7")
    a(f"s_lshl_b32 s39, s24, 5")
    a(f"s_add_u32 s38, s38, s39")
    a(f"v_add_u32 v{T+5}, s38, v{vL31}")
    if typ==0:
        a(f"v_lshlrev_b32 v{T+6}, 3, v{T+5}")
    elif typ==1:
        a(f"s_lshr_b32 s39, s38, 5")
        a(f"s_mul_i32 s39, s39, 3072")
        a(f"v_lshl_add_u32 v{T+6}, v{vL31}, 3, s39")
        a(f"v_mov_b32 v{T+18}, 0x3f80")
        a(f"v_mov_b32 v{T+19}, 0")
    else:
        a(f"v_lshlrev_b32 v{T+6}, 3, v{T+5}")
        a(f"v_lshl_add_u32 v{T+6}, v{vH}, 14, v{T+6}")
        c1=-2.0*0.7978845608028654*1.4426950408889634
        c2=c1*0.044715
        a(f"s_mov_b32 s50, {f32(c2)}"); a(f"s_mov_b32 s51, {f32(c2)}")
        a(f"v_mov_b32 v{T+16}, {f32(c1)}"); a(f"v_mov_b32 v{T+17}, {f32(c1)}")
    a(f"v_lshlrev_b32 v{T+8}, 4, v{vH}")
    a(f"v_add_u32 v{T+8}, {L_CS}, v{T+8}")
    CS=vBf
    for k in range(nt):
        a(f"s_cmp_ge_u32 s{40+k}, s36")
        a(f"s_cbranch_scc1 {tag}_skip{k}")
        a(f"s_lshl_b32 s37, s{40+k}, 7")
        a(f"v_add_u32 v{T+9}, s37, v{T+8}")
        for g in range(4):
            a(f"ds_read_b128 {vr(CS+4*g,4)}, v{T+9} offset:{32*g}")
        if typ==3:
            for g in range(4):
                a(f"ds_read_b128 {vr(CS+16+4*g,4)}, v{T+9} offset:{1024+32*g}")
        a("s_waitcnt lgkmcnt(0)")
        acc=vAcc+16*k
        for pr in range(8):
            c=CS+2*pr; u=acc+2*pr
            if typ==3:
                a(f"v_pk_fma_f32 {vr(c,2)}, {vr(c,2)}, {vr(Be,2)}, {vr(c+16,2)} op_sel_hi:[1,0,1] neg_lo:[0,0,1] neg_hi:[0,0,1]")
            else:
                a(f"v_pk_mul_f32 {vr(c,2)}, {vr(c,2)}, {vr(Be,2)} op_sel_hi:[1,0]")
            a(f"v_pk_fma_f32 {vr(u,2)}, {vr(u,2)}, {vr(Al,2)}, {vr(c,2)} op_sel_hi:[1,0,1] neg_lo:[0,0,1] neg_hi:[0,0,1]")
        if typ==3:
            for pr in range(8):
                gelu_pair(a, acc+2*pr, T+10+2*(pr%2))
        for pr in range(8):
            a(f"v_cvt_pk_bf16_f32 v{acc+pr}, v{acc+2*pr}, v{acc+2*pr+1}") if False else None
        for pr in range(8):
            a(f"v_cvt_pk_bf16_f32 v{CS+pr}, v{acc+2*pr}, v{acc+2*pr+1}")
        if typ==3:
            a(f"s_lshl_b32 s37, s{40+k}, 5")
            a(f"s_add_u32 s37, s37, s27")
            a(f"s_lshl_b32 s37, s37, 12")
            for g in range(4):
                a(f"buffer_store_dwordx2 {vr(CS+2*g,2)}, v{T+6}, s[16:19], s37 offen")
                if g<3: a(f"s_add_u32 s37, s37, 32768")
        else:
            a(f"s_mul_i32 s37, s35, 56")
            a(f"s_lshl_b32 s39, s{40+k}, 3")
            a(f"s_add_u32 s37, s37, s39")
            for g in range(4):
                a(f"v_add_u32 v{T+10}, s37, v{vH}")
                if g: a(f"v_add_u32 v{T+10}, {2*g}, v{T+10}")
                if typ==0:
                    a(f"v_lshl_add_u32 v{T+13}, v{T+10}, 14, v{T+6}")
                    a(f"buffer_store_dwordx2 {vr(CS+2*g,2)}, v{T+13}, s[16:19], 0 offen")
                else:
                    a(f"v_mul_u32_u24 v{T+11}, 205, v{T+10}")
                    a(f"v_lshrrev_b32 v{T+11}, 10, v{T+11}")
                    a(f"v_mul_u32_u24 v{T+12}, 5, v{T+11}")
                    a(f"v_sub_u32 v{T+12}, v{T+10}, v{T+12}")
                    a(f"v_mul_u32_u24 v{T+13}, 0x30000, v{T+11}")
                    a(f"v_lshl_add_u32 v{T+13}, v{T+12}, 8, v{T+13}")
                    a(f"v_add_u32 v{T+13}, v{T+13}, v{T+6}")
                    a(f"v_cmp_eq_u32 vcc, 4, v{T+12}")
                    a(f"buffer_store_dwordx2 {vr(CS+2*g,2)}, v{T+13}, s[16:19], 0 offen")
                    a("s_and_saveexec_b64 s[54:55], vcc")
                    a(f"s_cbranch_execz {tag}_nc{k}{g}")
                    a(f"buffer_store_dwordx2 {vr(T+18,2)}, v{T+13}, s[16:19], 0 offen offset:256")
                    a(f"{tag}_nc{k}{g}:")
                    a("s_mov_b64 exec, s[54:55]")
        a(f"{tag}_skip{k}:")

def epi_v(a, j):
    nt=4 if j==0 else 3
    T=vT; tag=f"L_k1_e2{j}"
    AL=vA; BE=vA+16
    a(f"s_lshl_b32 s37, s24, 7")
    a(f"s_add_u32 s37, s37, {L_ROWA}")
    a(f"v_lshl_add_u32 v{T+4}, v{vH}, 4, s37")
    for g in range(4):
        a(f"ds_read_b128 {vr(AL+4*g,4)}, v{T+4} offset:{32*g}")
        a(f"ds_read_b128 {vr(BE+4*g,4)}, v{T+4} offset:{512+32*g}")
    a(f"s_lshl_b32 s38, s20, 2")
    a(f"s_add_u32 s38, s38, s24")
    a(f"s_mul_i32 s38, s38, 3072")
    a(f"s_add_u32 s38, s38, 1536")
    a(f"v_mul_u32_u24 v{T+5}, 384, v{vH}")
    a(f"v_add_u32 v{T+5}, s38, v{T+5}")
    a(f"v_lshlrev_b32 v{T+8}, 2, v{vL31}")
    a(f"v_add_u32 v{T+8}, {L_CS}, v{T+8}")
    P=vBf
    for k in range(nt):
        a(f"s_cmp_ge_u32 s{40+k}, s36")
        a(f"s_cbranch_scc1 {tag}_skip{k}")
        a(f"s_lshl_b32 s37, s{40+k}, 7")
        a(f"v_add_u32 v{T+9}, s37, v{T+8}")
        a(f"ds_read_b32 v{T}, v{T+9}")
        a(f"s_mul_i32 s37, s35, 224")
        a(f"s_lshl_b32 s39, s{40+k}, 5")
        a(f"s_add_u32 s37, s37, s39")
        a(f"v_add_u32 v{T+10}, s37, v{vL31}")
        a(f"v_mul_u32_u24 v{T+11}, 3277, v{T+10}")
        a(f"v_lshrrev_b32 v{T+11}, 16, v{T+11}")
        a(f"v_mul_u32_u24 v{T+12}, 20, v{T+11}")
        a(f"v_sub_u32 v{T+12}, v{T+10}, v{T+12}")
        a(f"v_mul_u32_u24 v{T+13}, 0x30000, v{T+11}")
        a(f"v_lshl_add_u32 v{T+13}, v{T+12}, 4, v{T+13}")
        a(f"v_add_u32 v{T+13}, v{T+13}, v{T+5}")
        a("s_waitcnt lgkmcnt(0)")
        acc=vAcc+16*k
        for pr in range(8):
            u=acc+2*pr
            a(f"v_pk_mul_f32 {vr(T+2,2)}, {vr(BE+2*pr,2)}, {vr(T,2)} op_sel_hi:[1,0]")
            a(f"v_pk_fma_f32 {vr(u,2)}, {vr(u,2)}, {vr(AL+2*pr,2)}, {vr(T+2,2)} neg_lo:[0,0,1] neg_hi:[0,0,1]")
        for pr in range(8):
            a(f"v_cvt_pk_bf16_f32 v{P+pr}, v{acc+2*pr}, v{acc+2*pr+1}")
        a(f"buffer_store_dwordx4 {vr(P,4)}, v{T+13}, s[16:19], 0 offen")
        a(f"buffer_store_dwordx4 {vr(P+4,4)}, v{T+13}, s[16:19], 0 offen offset:768")
        a(f"v_cmp_eq_u32 vcc, 0, v{T+12}")
        a(f"v_mov_b32 v{T+14}, 0x3f803f80")
        a("s_nop 0")
        for r in range(4): a(f"v_cndmask_b32 v{P+8+r}, 0, v{T+14}, vcc")
        a(f"v_cmp_gt_u32 vcc, 4, v{T+12}")
        a("s_and_saveexec_b64 s[54:55], vcc")
        a(f"s_cbranch_execz {tag}_nc{k}")
        a(f"buffer_store_dwordx4 {vr(P+8,4)}, v{T+13}, s[16:19], 0 offen offset:320")
        a(f"buffer_store_dwordx4 {vr(P+8,4)}, v{T+13}, s[16:19], 0 offen offset:1088")
        a(f"{tag}_nc{k}:")
        a("s_mov_b64 exec, s[54:55]")
        a("s_nop 1")
        a(f"{tag}_skip{k}:")

def setup2(a):
    a("s_lshl_b32 s37, s24, 5")
    a(f"v_add_u32 v{vT}, s37, v{vL31}")
    a(f"v_bfe_u32 v{vT+1}, v{vT}, 1, 3")
    a(f"v_lshlrev_b32 v{vT}, 7, v{vT}")
    for t in range(4):
        a(f"v_add_u32 v{vT+2}, {2*t}, v{vH}")
        a(f"v_xor_b32 v{vT+2}, v{vT+2}, v{vT+1}")
        a(f"v_lshl_add_u32 v{vXa+t}, v{vT+2}, 4, v{vT}")
    a(f"v_bfe_u32 v{vT}, v{vLn}, 2, 2")
    a(f"v_lshl_add_u32 v{vT}, v{vH}, 3, v{vT}")
    a(f"v_mul_u32_u24 v{vT}, 448, v{vT}")
    a(f"v_and_b32 v{vT+1}, 3, v{vLn}")
    a(f"v_lshl_add_u32 v{vT}, v{vT+1}, 3, v{vT}")
    a(f"v_bfe_u32 v{vT+1}, v{vLn}, 4, 1")
    a(f"v_lshl_add_u32 v{vT}, v{vT+1}, 5, v{vT}")
    for k in range(4):
        a(f"s_lshl_b32 s37, s{40+k}, 6")
        a(f"s_add_u32 s37, s37, {WOFF}")
        a(f"v_add_u32 v{vB0+k}, s37, v{vT}")
        a(f"v_add_u32 v{vB1+k}, 57344, v{vB0+k}")

def k1(a, prof=0, force_fb=False):
    PROF[0]=prof
    a(".p2align 8")
    a(".globl k1_kernel")
    a(".type k1_kernel,@function")
    a("k1_kernel:")
    tl_start(a)
    a("s_load_dwordx4 s[56:59], s[0:1], 0")
    a("s_load_dwordx4 s[60:63], s[0:1], 32")
    a("s_load_dwordx2 s[4:5], s[0:1], 80")
    a("s_load_dwordx2 s[68:69], s[0:1], 72")
    a("s_cmp_ge_u32 s2, 256")
    a("s_cbranch_scc1 L_k1_end")
    stamp(a,0,prof)
    det(a,0)
    a("s_and_b32 s37, s2, 7")
    a("s_lshr_b32 s38, s2, 3")
    a("s_and_b32 s20, s37, 1")
    a("s_lshl_b32 s20, s20, 3")
    a("s_and_b32 s39, s38, 7")
    a("s_add_u32 s20, s20, s39")
    a("s_lshr_b32 s21, s37, 1")
    a("s_lshl_b32 s21, s21, 2")
    a("s_lshr_b32 s39, s38, 3")
    a("s_add_u32 s21, s21, s39")
    a(f"v_lshrrev_b32 v{vT}, 6, v0")
    a(f"v_and_b32 v{vLn}, 63, v0")
    a("s_nop 0")
    a(f"v_readfirstlane_b32 s23, v{vT}")
    a(f"v_and_b32 v{vL31}, 31, v{vLn}")
    a(f"v_lshrrev_b32 v{vH}, 5, v{vLn}")
    a("s_and_b32 s24, s23, 3")
    a("s_lshr_b32 s25, s23, 2")
    a("s_mov_b32 s32, 0x3f803f80")
    a("s_cmp_ge_u32 s21, 9")
    a("s_cbranch_scc1 L_k1_mlp")
    a("s_mul_i32 s22, s21, 43")
    a("s_lshr_b32 s22, s22, 7")
    a("s_mul_i32 s37, s22, 3")
    a("s_sub_u32 s35, s21, s37")
    a("s_mul_i32 s27, s22, 640")
    a("s_mul_i32 s37, s35, 224")
    a("s_add_u32 s27, s27, s37")
    a("s_mov_b32 s26, 3840")
    a("s_cmp_eq_u32 s35, 2")
    a("s_cselect_b32 s36, 6, 7")
    a("s_waitcnt lgkmcnt(0)")
    srd(a, 12, 58, 59, 0, 640*3840)
    a("s_cmp_eq_u32 s22, 0")
    a(f"s_mov_b32 s38, {WS_KV}")
    a(f"s_cselect_b32 s37, {WS_QI}, s38")
    a(f"s_mov_b32 s38, {WS_H-WS_KV}")
    a(f"s_cselect_b32 s18, {WS_KV-WS_QI}, s38")
    a("s_add_u32 s16, s4, s37")
    a("s_addc_u32 s17, s5, 0")
    a("s_mov_b32 s19, 0x00020000")
    a("s_branch L_k1_common")
    a("L_k1_mlp:")
    a("s_mov_b32 s22, 3")
    a("s_sub_u32 s35, s21, 9")
    a("s_mul_i32 s27, s35, 224")
    a("s_mov_b32 s26, 3072")
    a("s_cmp_eq_u32 s35, 6")
    a("s_cselect_b32 s36, 6, 7")
    a("s_waitcnt lgkmcnt(0)")
    srd(a, 12, 60, 61, 0, 640*3072)
    srd(a, 16, 4, 5, WS_H, WS_O-WS_H)
    a("L_k1_common:")
    srd(a, 8, 56, 57, 0, 2621440)
    srd(a, 44, 62, 63, 0, 3072)
    a("s_lshl_b32 s33, s26, 6")
    for k in range(4):
        a(f"s_add_u32 s37, s24, {k}")
        a(f"s_and_b32 s38, s37, 3")
        a(f"s_cmp_ge_u32 s37, 3"); a(f"s_cselect_b32 s39, 3, 0"); a(f"s_sub_u32 s37, s37, s39")
        a(f"s_cmp_ge_u32 s37, 3"); a(f"s_cselect_b32 s39, 3, 0"); a(f"s_sub_u32 s37, s37, s39")
        a(f"s_add_u32 s37, s37, 4")
        a(f"s_cmp_eq_u32 s25, 0")
        a(f"s_cselect_b32 s{40+k}, s38, s37")
    a("s_lshl_b32 s37, s40, 5")
    a("s_add_u32 s37, s37, s27")
    a(f"v_add_u32 v{vT}, s37, v{vL31}")
    a(f"v_lshlrev_b32 v{vT}, 1, v{vT}")
    a(f"buffer_load_ushort v{vBias}, v{vT}, s[44:47], 0 offen")
    for q in range(4):
        a(f"s_add_u32 s37, s23, {8*q}")
        a(f"s_min_u32 s37, s37, 27")
        a(f"s_lshl_b32 s{28+q}, s37, 10")
        a(f"v_lshl_add_u32 v{vT}, v{vLn}, 4, s{28+q}")
        a(f"v_lshrrev_b32 v{vT+1}, 6, v{vT}")
        a(f"v_mul_u32_u24 v{vT+1}, 9363, v{vT+1}")
        a(f"v_lshrrev_b32 v{vT+1}, 16, v{vT+1}")
        a(f"v_mul_u32_u24 v{vT+2}, 448, v{vT+1}")
        a(f"v_sub_u32 v{vT+2}, v{vT}, v{vT+2}")
        a(f"v_mul_lo_u32 v{vT+1}, v{vT+1}, s26")
        a(f"s_lshl_b32 s37, s27, 1")
        a(f"v_add3_u32 v{vDma+q}, v{vT+1}, v{vT+2}, s37")
    a("s_lshl_b32 s49, s23, 11")
    for q in range(2):
        a(f"s_lshl_b32 s37, s23, 4")
        a(f"s_add_u32 s37, s37, {8*q}")
        a(f"v_lshrrev_b32 v{vT}, 3, v{vLn}")
        a(f"v_add_u32 v{vT}, s37, v{vT}")
        a(f"v_bfe_u32 v{vT+1}, v{vT}, 1, 3")
        a(f"v_and_b32 v{vT+2}, 7, v{vLn}")
        a(f"v_xor_b32 v{vT+1}, v{vT+1}, v{vT+2}")
        a("s_lshl_b32 s38, s20, 7")
        a(f"v_add_u32 v{vT}, s38, v{vT}")
        a(f"v_mul_u32_u24 v{vT}, 1280, v{vT}")
        a(f"v_lshl_add_u32 v{vDma+4+q}, v{vT+1}, 4, v{vT}")
    srd(a, 84, 4, 5, WS_RS, WS_TOP-WS_RS)
    a("s_lshl_b32 s37, s2, 7")
    a(f"s_add_u32 s37, s37, {WS_FL-WS_RS}")
    a(f"v_mov_b32 v{vT}, 0")
    a("s_mov_b64 s[54:55], exec")
    a("s_mov_b64 exec, 1")
    a(f"buffer_store_dword v{vT}, v{vT}, s[84:87], s37 offen")
    a("s_mov_b64 exec, s[54:55]")
    a(f"v_and_b32 v{vT}, 15, v{vLn}")
    a(f"v_lshrrev_b32 v{vT+1}, 4, v{vLn}")
    a(f"v_cmp_eq_u32 vcc, v{vT}, v{vT+1}")
    a(f"v_mov_b32 v{vT+2}, 0x3f803f80")
    a("s_nop 0")
    for r in range(4): a(f"v_cndmask_b32 v{vSel+r}, 0, v{vT+2}, vcc")
    for r in range(4): a(f"v_mov_b32 v{vRS+r}, 0")
    a("s_cmp_eq_u32 s22, 2")
    a("s_cbranch_scc1 L_k1_cform")
    a("s_cmp_eq_u32 s25, 0")
    a("s_cbranch_scc0 L_k1_ml_t1")
    mainloop(a,0,False,"k1a",force_fb)
    a("s_branch L_k1_post0")
    a("L_k1_ml_t1:")
    mainloop(a,1,False,"k1b",force_fb)
    a("s_branch L_k1_post1")
    a("L_k1_cform:")
    a("s_cmp_eq_u32 s25, 0")
    a("s_cbranch_scc0 L_k1_ml_c1")
    mainloop(a,0,True,"k1c",force_fb)
    a("s_branch L_k1_post0")
    a("L_k1_ml_c1:")
    mainloop(a,1,True,"k1d",force_fb)
    a("L_k1_post1:")
    a("L_k1_post0:")
    a("s_nop 7")
    T=vT
    a(f"v_add_f32 v{vSt}, v{vRS}, v{vRS+1}")
    a(f"v_add_f32 v{vSt+1}, v{vRS+2}, v{vRS+3}")
    xsum(a, vSt, T, T+1)
    xsum(a, vSt+1, T, T+1)
    a("s_lshl_b32 s37, s25, 10")
    a("s_lshl_b32 s38, s24, 8")
    a("s_add_u32 s38, s38, %d" % L_EX)
    a("s_add_u32 s37, s37, s38")
    a(f"v_lshl_add_u32 v{T+2}, v{vL31}, 3, s37")
    a(f"ds_write_b64 v{T+2}, {vr(vSt,2)}")
    colstats(a)
    a("s_waitcnt lgkmcnt(0)")
    a("s_barrier")
    a("s_cmp_eq_u32 s25, 0")
    a("s_cbranch_scc1 L_k1_post2")
    a(f"v_lshl_add_u32 v{T+2}, v{vL31}, 3, s38")
    a(f"ds_read_b64 {vr(T+4,2)}, v{T+2}")
    a("s_waitcnt lgkmcnt(0)")
    a(f"v_add_f32 v{vSt}, v{vSt}, v{T+4}")
    a(f"v_add_f32 v{vSt+2}, v{vSt+1}, v{T+5}")
    rowstats(a)
    a("L_k1_post2:")
    a("s_waitcnt lgkmcnt(0)")
    a("s_barrier")
    stamp(a,2,prof)
    det(a,11)
    for typ in range(4):
        a(f"s_cmp_lg_u32 s22, {typ}")
        a(f"s_cbranch_scc1 L_k1_nt{typ}")
        a("s_cmp_eq_u32 s25, 0")
        a(f"s_cbranch_scc0 L_k1_ep{typ}_1")
        if typ==2: epi_v(a,0)
        else: epi_ct(a,0,typ)
        a("s_branch L_k1_fin")
        a(f"L_k1_ep{typ}_1:")
        if typ==2: epi_v(a,1)
        else: epi_ct(a,1,typ)
        a("s_branch L_k1_fin")
        a(f"L_k1_nt{typ}:")
    a("L_k1_fin:")
    stamp(a,3,prof)
    prof_out(a,prof,4,23,"k1")
    if DET[0]:
        a("s_waitcnt vmcnt(0)")
        a("s_memtime s[90:91]")
        a("s_waitcnt lgkmcnt(0)")
        a(f"v_writelane_b32 v250, s90, 12")
        a(f"s_cmp_lg_u32 s2, {DET[0]-1}")
        a("s_cbranch_scc1 L_k1_nodet")
        a("s_cmp_lg_u32 s23, 0")
        a("s_cbranch_scc1 L_k1_nodet")
        a(f"s_add_u32 s92, s4, {WS_TOP}")
        a("s_addc_u32 s93, s5, 0")
        a("s_mov_b32 s94, 256")
        a("s_mov_b32 s95, 0x00020000")
        a("s_mov_b64 exec, -1")
        a("v_readlane_b32 s90, v250, 0")
        a("v_and_b32 v14, 63, v0")
        a("v_lshlrev_b32 v14, 2, v14")
        a("s_nop 3")
        a("v_subrev_u32 v250, s90, v250")
        a("s_mov_b64 exec, 0xffff")
        a("buffer_store_dword v250, v14, s[92:95], 0 offen")
        a("L_k1_nodet:")
    tl_end(a,0,"k1")
    a("L_k1_end:")
    a("s_endpgm")
```

```python
from common import *
import gemm1
gb=gemm1.G('b1',3,2,0)
import struct
def f32(x): return "0x%08x" % struct.unpack("<I", struct.pack("<f", x))[0]
SG=20480
vLn=2; vL15=3; vG=1
vDm=4
vAo=7
vBa=8
vRw=9
vT=10
vAcc=20
vAr=60
vBf=100
vKG=120
L_DEC=61440
PRIO=[0,0]
WITH_B1=[False]

def sig_mul(a, u, t, n):
    for i in range(n): a(f"v_mul_f32 v{t+i}, {f32(-1.4426950408889634)}, v{u+i}")
    for i in range(n): a(f"v_exp_f32 v{t+i}, v{t+i}")
    a("s_nop 0")
    for i in range(n): a(f"v_add_f32 v{t+i}, 1.0, v{t+i}")
    for i in range(n): a(f"v_rcp_f32 v{t+i}, v{t+i}")
    a("s_nop 0")
    for i in range(n): a(f"v_mul_f32 v{u+i}, v{u+i}, v{t+i}")
def rnd(a, u, n):
    for i in range(0,n,2):
        a(f"v_cvt_pk_bf16_f32 v{u+i}, v{u+i}, v{u+i+1}")
        a(f"v_and_b32 v{u+i+1}, 0xffff0000, v{u+i}")
        a(f"v_lshlrev_b32 v{u+i}, 16, v{u+i}")
def unpack(a, dst, src, n):
    for i in range(n):
        a(f"v_lshlrev_b32 v{dst+2*i}, 16, v{src+i}")
        a(f"v_and_b32 v{dst+2*i+1}, 0xffff0000, v{src+i}")

def aload(a, r, s, srdn, sc=""):
    a(f"s_mov_b32 s34, {s*32*16384}")
    a(f"s_add_u32 s35, s34, {4*16384}")
    a(f"buffer_load_dwordx2 {vr(r,2)}, v{vAo}, s[{srdn}:{srdn+3}], s34 offen{sc}")
    a(f"buffer_load_dwordx2 {vr(r+2,2)}, v{vAo}, s[{srdn}:{srdn+3}], s35 offen{sc}")
    a(f"buffer_load_dwordx2 {vr(r+4,2)}, v{vAo}, s[{srdn}:{srdn+3}], s34 offen offset:128{sc}")
    a(f"buffer_load_dwordx2 {vr(r+6,2)}, v{vAo}, s[{srdn}:{srdn+3}], s35 offen offset:128{sc}")
def wdma(a, s, slot, nd, srdn):
    a(f"s_mov_b32 s34, {s*128*1280}")
    for q in range(nd):
        a(f"s_add_u32 m0, s{28+q}, {slot*SG}")
        a("s_nop 0")
        a(f"buffer_load_dwordx4 v{vDm+q}, s[{srdn}:{srdn+3}], s34 offen lds")
def bfr(a, dst, slot):
    for ct in range(5):
        o=slot*SG+ct*32
        a(f"ds_read_b64_tr_b16 {vr(dst+4*ct,2)}, v{vBa} offset:{o}")
        a(f"ds_read_b64_tr_b16 {vr(dst+4*ct+2,2)}, v{vBa} offset:{o+16*160}")
def mm(a, A, B, first):
    for ct in range(5):
        for tt in range(2):
            acc=vAcc+4*(ct*2+tt)
            C="0" if first else vr(acc,4)
            a(f"v_mfma_f32_16x16x32_bf16 {vr(acc,4)}, {vr(B+4*ct,4)}, {vr(A+4*tt,4)}, {C}")

def reduce_write(a):
    a("s_barrier")
    a("s_nop 4")
    for ct in range(5):
        for tt in range(2):
            acc=vAcc+4*(ct*2+tt)
            a(f"ds_write_b128 v{vRw}, {vr(acc,4)} offset:{tt*5120+ct*64}")
    a("s_waitcnt lgkmcnt(0)")
    a("s_barrier")

def item_addr(a, r):
    a(f"v_add_u32 v{vT}, {512*r}, v0")
    a(f"v_min_u32 v{vT}, 639, v{vT}")
    a(f"v_mul_u32_u24 v{vT+1}, 6554, v{vT}")
    a(f"v_lshrrev_b32 v{vT+1}, 16, v{vT+1}")
    a(f"v_mul_u32_u24 v{vT+2}, 10, v{vT+1}")
    a(f"v_sub_u32 v{vT+2}, v{vT}, v{vT+2}")
    a(f"v_bfe_u32 v{vT+6}, v{vT+1}, 1, 2")
    a(f"v_lshlrev_b32 v{vT+7}, 1, v{vT+2}")
    a(f"v_xor_b32 v{vT+7}, v{vT+7}, v{vT+6}")
    a(f"v_mul_u32_u24 v{vT+8}, 320, v{vT+1}")
    a(f"v_lshl_add_u32 v{vT+3}, v{vT+7}, 4, v{vT+8}")
    a(f"v_xor_b32 v{vT+7}, 1, v{vT+7}")
    a(f"v_lshl_add_u32 v{vT+5}, v{vT+7}, 4, v{vT+8}")
    a("s_lshl_b32 s37, s20, 6")
    a(f"v_add_u32 v{vT+4}, s37, v{vT+1}")
    a(f"v_mul_u32_u24 v{vT+4}, 1280, v{vT+4}")
    a(f"v_lshl_add_u32 v{vT+4}, v{vT+2}, 4, v{vT+4}")
    a("s_mul_i32 s37, s21, 160")
    a(f"v_add_u32 v{vT+4}, s37, v{vT+4}")

def item_sum(a):
    P=vAcc
    for kq in range(4):
        a(f"ds_read_b128 {vr(P+8*kq,4)}, v{vT+3} offset:{kq*20480}")
        a(f"ds_read_b128 {vr(P+8*kq+4,4)}, v{vT+5} offset:{kq*20480}")
    a("s_waitcnt lgkmcnt(0)")
    for i in range(8): a(f"v_add_f32 v{P+i}, v{P+i}, v{P+8+i}")
    for i in range(8): a(f"v_add_f32 v{P+16+i}, v{P+16+i}, v{P+24+i}")
    for i in range(8): a(f"v_add_f32 v{P+i}, v{P+i}, v{P+16+i}")
    rnd(a, P, 8)

def setup(a):
    a("s_and_b32 s20, s3, 7")
    a("s_lshl_b32 s20, s20, 2")
    a("s_bfe_u32 s21, s3, 0x20003")
    a("s_add_u32 s20, s20, s21")
    a("s_lshr_b32 s21, s3, 5")
    a(f"v_lshrrev_b32 v{vT}, 6, v0")
    a(f"v_and_b32 v{vLn}, 63, v0")
    a("s_nop 0")
    a(f"v_readfirstlane_b32 s23, v{vT}")
    a(f"v_and_b32 v{vL15}, 15, v{vLn}")
    a(f"v_lshrrev_b32 v{vG}, 4, v{vLn}")
    a("s_and_b32 s24, s23, 1")
    a("s_lshr_b32 s25, s23, 1")
    for q in range(3):
        a(f"s_add_u32 s37, s23, {8*q}")
        a(f"s_min_u32 s37, s37, 19")
        a(f"s_lshl_b32 s{28+q}, s37, 10")
        a(f"v_lshl_add_u32 v{vT}, v{vLn}, 4, s{28+q}")
        a(f"v_lshrrev_b32 v{vT+1}, 5, v{vT}")
        a(f"v_mul_u32_u24 v{vT+1}, 13108, v{vT+1}")
        a(f"v_lshrrev_b32 v{vT+1}, 16, v{vT+1}")
        a(f"v_mul_u32_u24 v{vT+2}, 160, v{vT+1}")
        a(f"v_sub_u32 v{vT+2}, v{vT}, v{vT+2}")
        a(f"v_mul_u32_u24 v{vT+1}, 1280, v{vT+1}")
        a(f"s_mul_i32 s37, s21, 160")
        a(f"v_add3_u32 v{vDm+q}, v{vT+1}, v{vT+2}, s37")
    a("s_lshl_b32 s37, s25, 3")
    a(f"v_add_u32 v{vT}, s37, v{vG}")
    a(f"v_lshlrev_b32 v{vT}, 14, v{vT}")
    a("s_lshl_b32 s37, s20, 6")
    a("s_lshl_b32 s38, s24, 5")
    a("s_add_u32 s37, s37, s38")
    a(f"v_add_u32 v{vT+1}, s37, v{vL15}")
    a(f"v_lshl_add_u32 v{vAo}, v{vT+1}, 3, v{vT}")
    a(f"v_bfe_u32 v{vT}, v{vLn}, 2, 2")
    a(f"v_lshl_add_u32 v{vT}, v{vG}, 2, v{vT}")
    a("s_lshl_b32 s37, s25, 5")
    a(f"v_add_u32 v{vT}, s37, v{vT}")
    a(f"v_mul_u32_u24 v{vT}, 160, v{vT}")
    a(f"v_and_b32 v{vT+1}, 3, v{vLn}")
    a(f"v_lshl_add_u32 v{vBa}, v{vT+1}, 3, v{vT}")
    a("s_mul_i32 s37, s25, 20480")
    a("s_mul_i32 s38, s24, 10240")
    a("s_add_u32 s37, s37, s38")
    a(f"v_bfe_u32 v{vT}, v{vL15}, 1, 2")
    a(f"v_xor_b32 v{vT}, v{vT}, v{vG}")
    a(f"v_mul_u32_u24 v{vT+1}, 320, v{vL15}")
    a(f"v_lshl_add_u32 v{vT}, v{vT}, 4, v{vT+1}")
    a(f"v_add_u32 v{vRw}, s37, v{vT}")

def srds(a):
    a("s_load_dwordx4 s[56:59], s[0:1], 48")
    a("s_load_dwordx2 s[60:61], s[0:1], 16")
    a("s_load_dwordx2 s[62:63], s[0:1], 0")
    a("s_load_dwordx4 s[64:67], s[0:1], 64")
    a("s_waitcnt lgkmcnt(0)")
    srd(a, 8, 4, 5, WS_H, WS_O-WS_H)
    srd(a, 12, 56, 57, 0, 1536*1280)
    srd(a, 16, 64, 65, 0, 2621440)
    srd(a, 44, 58, 59, 0, 1280)
    srd(a, 48, 62, 63, 0, 2621440)
    srd(a, 52, 60, 61, 0, 640*1280)
    srd(a, 68, 4, 5, WS_O, WS_G-WS_O)

def b1_task(a):
    g=gb; T=g.vT
    a("L_b1_task:")
    a("s_load_dwordx2 s[56:57], s[0:1], 0")
    a("s_load_dwordx4 s[60:63], s[0:1], 32")
    a(f"v_lshrrev_b32 v{T}, 6, v0")
    a(f"v_and_b32 v{g.vLn}, 63, v0")
    a("s_nop 0")
    a(f"v_readfirstlane_b32 s23, v{T}")
    a(f"v_and_b32 v{g.vL31}, 31, v{g.vLn}")
    a(f"v_lshrrev_b32 v{g.vH}, 5, v{g.vLn}")
    a("s_and_b32 s24, s23, 3")
    a("s_lshr_b32 s25, s23, 2")
    a("s_mul_i32 s27, s21, 96")
    a("s_mul_i32 s35, s21, 24")
    a("s_mov_b32 s26, 3072")
    g.lane_setup(a)
    a("s_waitcnt lgkmcnt(0)")
    srd(a, 8, 56, 57, 0, 2621440)
    srd(a, 12, 60, 61, 0, 640*3072)
    srd(a, 16, 4, 5, WS_H, WS_O-WS_H)
    srd(a, 44, 62, 63, 0, 3072)
    srd(a, 84, 4, 5, WS_RS, WS_TOP-WS_RS)
    a("s_mul_i32 s78, s21, 384")
    a(f"s_add_u32 s78, s78, {WS_CS-WS_RS+8192}")
    a("s_lshl_b32 s37, s40, 5")
    a("s_add_u32 s37, s37, s27")
    a(f"v_add_u32 v{T}, s37, v{g.vL31}")
    a(f"v_lshlrev_b32 v{T}, 1, v{T}")
    a(f"buffer_load_ushort v{g.vBias}, v{T}, s[44:47], 0 offen")
    a("s_cmp_eq_u32 s25, 0")
    a("s_cbranch_scc0 L_b1_j1")
    for j in range(2):
        if j==1: a("L_b1_j1:")
        nd=g.nd(j)
        g.statloads(a, j, "s78", 16384, "")
        def pre(a, j=j, nd=nd):
            a(f"s_waitcnt vmcnt({2*nd})")
            if j==1: g.rowparams(a, True)
            g.colparams(a, True)
        def wait(a, st, n): a(f"s_waitcnt vmcnt({n}) lgkmcnt(0)")
        nop=lambda a,st: None
        g.loop(a, j, False, dict(pre=pre, wait=wait, preb=nop, postb0=nop, postb=nop))
        a("s_nop 15")
        g.epi_ct(a, j, 3, " sc1")
        if j==0: a("s_branch L_b1_pub")
    a("L_b1_pub:")
    a("s_waitcnt vmcnt(0)")
    a("s_barrier")
    a("s_cmp_lg_u32 s23, 0")
    a("s_cbranch_scc1 L_b1_nof")
    a("s_lshl_b32 s36, s20, 4")
    a("s_add_u32 s36, s36, s21")
    a("s_lshl_b32 s36, s36, 7")
    a(f"s_add_u32 s36, s36, {WS_FL+32768}")
    a("v_mov_b32 v10, s36")
    a("v_mov_b32 v11, 1")
    a("s_mov_b64 s[54:55], exec")
    a("s_mov_b64 exec, 1")
    a("global_store_dword v10, v11, s[4:5] sc1")
    a("s_mov_b64 exec, s[54:55]")
    a("L_b1_nof:")

def wait_flags(a, tag, base_sgpr_code, nfl, sel, force_help):
    a("s_cmp_lg_u32 s23, 0")
    a(f"s_cbranch_scc1 L_{tag}_wd")
    a(f"s_mov_b32 s{sel}, 0")
    base_sgpr_code(a)
    a(f"v_and_b32 v{vT}, {nfl-1}, v{vLn}")
    a(f"v_lshl_add_u32 v{vT}, v{vT}, 7, s37")
    a("s_mov_b32 s38, 0")
    a(f"L_{tag}_poll:")
    a(f"global_load_dword v{vT+1}, v{vT}, s[4:5] sc1")
    a("s_waitcnt vmcnt(0)")
    a(f"v_cmp_ne_u32 vcc, 1, v{vT+1}")
    a("s_nop 3")
    a("s_cmp_eq_u64 vcc, 0")
    a(f"s_cbranch_scc1 L_{tag}_pok")
    a("s_sleep 12")
    a("s_add_u32 s38, s38, 1")
    a(f"s_cmp_lt_u32 s38, {2000 if not force_help else 1}")
    a(f"s_cbranch_scc1 L_{tag}_poll")
    a("s_ff1_i32_b64 s39, vcc")
    a(f"s_add_u32 s{sel}, s39, 1")
    a(f"L_{tag}_pok:")
    a(f"v_mov_b32 v{vT}, {L_DEC}")
    a(f"v_mov_b32 v{vT+1}, s{sel}")
    a(f"ds_write_b32 v{vT}, v{vT+1}")
    a(f"L_{tag}_wd:")
    a("s_waitcnt vmcnt(0) lgkmcnt(0)")
    a("s_barrier")
    a(f"v_mov_b32 v{vT}, {L_DEC}")
    a(f"ds_read_b32 v{vT+1}, v{vT}")
    a("s_waitcnt lgkmcnt(0)")
    a(f"v_readfirstlane_b32 s{sel}, v{vT+1}")
    a("s_nop 3")

def mlp_role(a, force_help=False):
    tag="mb"
    a(f"s_setprio {PRIO[0]}")
    if not WITH_B1[0]:
        setup(a); srds(a)
        a("s_branch L_mb_m2go")
    a("s_and_b32 s20, s3, 7")
    a("s_lshl_b32 s20, s20, 1")
    a("s_bfe_u32 s21, s3, 0x10003")
    a("s_add_u32 s20, s20, s21")
    a("s_lshr_b32 s21, s3, 4")
    b1_task(a)
    a("L_mb_m2:")
    setup(a)
    srds(a)
    def hb(a):
        a("s_lshr_b32 s37, s20, 1")
        a("s_lshl_b32 s37, s37, 11")
        a(f"s_add_u32 s37, s37, {WS_FL+32768}")
    wait_flags(a, "mbh", hb, 16, 95, force_help)
    a("s_cmp_eq_u32 s95, 0")
    a("s_cbranch_scc1 L_mb_m2go")
    a("s_barrier")
    a("s_lshr_b32 s20, s20, 1")
    a("s_sub_u32 s21, s95, 1")
    a("s_branch L_b1_task")
    a("L_mb_m2go:")
    a(f"s_setprio {PRIO[1]}")
    tl_mid(a,1)
    A0=vAr; B0=vBf
    NS=12
    a("s_cmp_ge_u32 s23, 4")
    a(f"s_cbranch_scc1 L_{tag}_hi")
    for nd,lab in ((3,"lo"),(2,"hi")):
        if lab=="hi": a(f"L_{tag}_hi:")
        npst=4+nd
        for s in range(3):
            aload(a, A0+8*(s%4), s, 8, " sc1"); wdma(a, s, s%3, nd, 12)
        a(f"s_waitcnt vmcnt({2*npst})")
        a("s_barrier")
        bfr(a, B0, 0)
        for s in range(NS):
            a("s_waitcnt lgkmcnt(0)")
            mm(a, A0+8*(s%4), B0, s==0)
            if s<NS-1:
                a(f"s_waitcnt vmcnt({npst if s+2<NS else 0})")
                a("s_barrier")
                if s+3<NS:
                    aload(a, A0+8*((s+3)%4), s+3, 8, " sc1"); wdma(a, s+3, s%3, nd, 12)
                bfr(a, B0, (s+1)%3)
        if lab=="lo": a(f"s_branch L_{tag}_red")
    a(f"L_{tag}_red:")
    reduce_write(a)
    for r in range(2):
        item_addr(a, r)
        a(f"v_lshl_add_u32 v{vT+6}, v{vT+2}, 4, s37")
        a(f"buffer_load_dwordx4 {vr(vAr,4)}, v{vT+6}, s[44:47], 0 offen")
        item_sum(a)
        a("s_waitcnt vmcnt(0)")
        P=vAcc; U=vAr+8
        unpack(a, U, vAr, 4)
        for i in range(8): a(f"v_add_f32 v{P+i}, v{P+i}, v{U+i}")
        rnd(a, P, 8)
        sig_mul(a, P, U, 8)
        for i in range(4): a(f"v_cvt_pk_bf16_f32 v{vKG+4*r+i}, v{P+2*i}, v{P+2*i+1}")
    a(f"L_{tag}_oproj:")
    tl_mid(a,0)
    a("s_barrier")
    for s_ in range(3): wdma(a, s_, s_, 3, 52)
    for s_ in (3,4):
        a(f"s_mov_b32 s34, {s_*128*1280}")
        for q in range(3):
            a(f"buffer_load_dwordx4 {vr(vAr+4*q,4)}, v{vDm+q}, s[52:55], s34 offen")
    def ab(a):
        a("s_lshr_b32 s37, s20, 2")
        a("s_lshl_b32 s37, s37, 12")
        a(f"s_add_u32 s37, s37, {WS_FL}")
    wait_flags(a, "mba", ab, 32, 97, force_help)
    a("s_cmp_eq_u32 s97, 0")
    a(f"s_cbranch_scc1 L_{tag}_go")
    a("s_barrier")
    a("s_sub_u32 s39, s97, 1")
    a("s_lshr_b32 s40, s39, 2")
    a("s_and_b32 s41, s39, 3")
    a("s_lshl_b32 s41, s41, 3")
    a("s_or_b32 s40, s40, s41")
    a("s_lshr_b32 s41, s20, 2")
    a("s_lshl_b32 s41, s41, 5")
    a("s_or_b32 s2, s40, s41")
    a("s_setprio 0")
    a("s_branch L_k2_att")
    a(f"L_{tag}_resume:")
    a("s_setprio 0")
    setup(a)
    srds(a)
    a(f"s_branch L_{tag}_oproj")
    a(f"L_{tag}_go:")
    for s_ in range(5): aload(a, vAr+8*s_, s_, 68, " sc1")
    bfr(a, vBf, 0)
    a("s_waitcnt vmcnt(16) lgkmcnt(0)")
    mm(a, vAr, vBf, True)
    a("s_barrier")
    wdma(a, 3, 0, 3, 52)
    bfr(a, vBf, 1)
    a("s_waitcnt vmcnt(15) lgkmcnt(0)")
    mm(a, vAr+8, vBf, False)
    a("s_barrier")
    wdma(a, 4, 1, 3, 52)
    bfr(a, vBf, 2)
    a("s_waitcnt vmcnt(14) lgkmcnt(0)")
    mm(a, vAr+16, vBf, False)
    a("s_waitcnt vmcnt(3)")
    a("s_barrier")
    bfr(a, vBf, 0)
    a("s_waitcnt lgkmcnt(0)")
    mm(a, vAr+24, vBf, False)
    a("s_waitcnt vmcnt(0)")
    a("s_barrier")
    bfr(a, vBf, 1)
    item_addr(a, 1)
    a(f"buffer_load_dwordx4 {vr(vAr+4,4)}, v{vT+4}, s[48:51], 0 offen")
    item_addr(a, 0)
    a(f"buffer_load_dwordx4 {vr(vAr,4)}, v{vT+4}, s[48:51], 0 offen")
    a("s_waitcnt lgkmcnt(0)")
    mm(a, vAr+32, vBf, False)
    reduce_write(a)
    for r in range(2):
        if r==1:
            a("s_cmp_ge_u32 s23, 2")
            a(f"s_cbranch_scc1 L_{tag}_done")
            item_addr(a, 1)
        item_sum(a)
        if r==0: a("s_waitcnt vmcnt(0)")
        P=vAcc; U=vAr+8
        unpack(a, U, vKG+4*r, 4)
        for i in range(8): a(f"v_mul_f32 v{P+i}, v{P+i}, v{U+i}")
        rnd(a, P, 8)
        unpack(a, U, vAr+4*r, 4)
        for i in range(8): a(f"v_add_f32 v{P+i}, v{P+i}, v{U+i}")
        for i in range(4): a(f"v_cvt_pk_bf16_f32 v{vBf+4*r+i}, v{P+2*i}, v{P+2*i+1}")
        a(f"buffer_store_dwordx4 {vr(vBf+4*r,4)}, v{vT+4}, s[16:19], 0 offen")
    a(f"L_{tag}_done:")
```

```python
import sys
from common import *
import attn, k1, mb
NAME="recurrent_scan__softmax_full_mha__mixer_channel_mlp__prompt"
HDR=open("cdna_kernels/"+NAME+".s.ref").read().split("; Override launch geometry")[0]

def k2(a, force_slow=False, prof=0):
    a(".p2align 8")
    a(".globl k2_kernel")
    a(".type k2_kernel,@function")
    a("k2_kernel:")
    tl_start(a)
    a("s_load_dwordx2 s[4:5], s[0:1], 80")
    a("s_cmp_ge_u32 s2, 512")
    a("s_cbranch_scc1 L_k2_end")
    a("s_mov_b32 s97, 0")
    a("s_mov_b32 s96, s2")
    a("s_waitcnt lgkmcnt(0)")
    a("s_cmp_ge_u32 s2, 256")
    a("s_cbranch_scc1 L_k2_mlp")
    if False:
        a("s_cmp_eq_u32 s2, 77")
        a("s_cbranch_scc1 L_k2_fin")
    a("L_k2_att:")
    attn.attn_role(a, force_slow, prof)
    a("s_cmp_lg_u32 s97, 0")
    a("s_cbranch_scc1 L_mb_resume")
    a("s_branch L_k2_fin")
    a("L_k2_mlp:")
    a("s_sub_u32 s3, s2, 256")
    mb.mlp_role(a, "help" in sys.argv)
    a("L_k2_fin:")
    a("s_mov_b32 s2, s96")
    tl_end(a,1,"k2")
    a("L_k2_end:")
    a("s_endpgm")

def build(out, force_slow=False, prof=0, prof1=0):
    a=Asm()
    launches=[("k1_kernel",(256,1,1),(512,1,1),k1.K1_LDS),("k2_kernel",(512,1,1),(512,1,1),81920)]
    txt=HDR
    for (k,g,b,l) in launches:
        txt+=f"; @launch kernel={k} grid=({g[0]},{g[1]},{g[2]}) block=({b[0]},{b[1]},{b[2]}) lds={l}\n"
    txt+='.amdgcn_target "amdgcn-amd-amdhsa--gfx950"\n.text\n'
    k1.k1(a, 0, False)
    k2(a, force_slow, prof)
    txt+=a.text()
    txt+='.section .rodata,"a"\n.p2align 6\n'
    txt+=kdesc("k1_kernel",k1.K1_VGPR)
    txt+=".p2align 6\n"+kdesc("k2_kernel",128)
    open(out,"w").write(txt)
if __name__=="__main__":
    TL[0]=("tl" in sys.argv)
    for x in sys.argv:
        if x.startswith("prio="): mb.PRIO[:]=[int(c) for c in x[5:]]
    k1.DET[0]=int([x[4:] for x in sys.argv if x.startswith("det=")][0]) if any(x.startswith("det=") for x in sys.argv) else 0
    build(sys.argv[1], force_slow=("slow" in sys.argv), prof=(100 if "prof" in sys.argv else 0), prof1=int([x[3:] for x in sys.argv if x.startswith("p1=")][0]) if any(x.startswith("p1=") for x in sys.argv) else 0)
```

```python
from common import *

vQm=4; vQr=8
vKf=[10,16]
vVf=[22,30]
vS=[40,56]
vP=72
vO=80
vA=96; vB=97; vC=98; vD=99
vT=100
vQr0=108
vM=110; vAl=111
CH=24576
def attn_body(a, i, first=False, last_pv2=True):
    Sc=vS[i%2]; Sn=vS[(i+1)%2]
    Kn=vKf[(i+1)%2]; Kl=vKf[i%2]
    Vc=vVf[i%2]; Vn=vVf[(i+1)%2]; Vp=vVf[(i-1)%2]
    kt=((i+2)%8)*3072; vt=((i+1)%8)*3072
    a("s_waitcnt lgkmcnt(0)")
    if i==6:
        a("s_waitcnt vmcnt(0)")
        a("s_barrier")
        a("s_cmp_ge_u32 s24, 6")
        a("s_cbranch_scc1 L_att_nodma")
        a("s_mov_b32 m0, s26")
        a("s_add_u32 s27, s25, %d" % (2*CH))
        a(f"buffer_load_dwordx4 v{vD}, s[8:11], s27 offen sc1 lds")
        a(f"buffer_load_dwordx4 v{vD}, s[8:11], s27 offen offset:1024 sc1 lds")
        a(f"buffer_load_dwordx4 v{vD}, s[8:11], s27 offen offset:2048 sc1 lds")
        a("L_att_nodma:")
        a(f"v_add_u32 v{vA}, s28, v{vA}")
        a(f"v_add_u32 v{vB}, s28, v{vB}")
    a(f"ds_read2st64_b64 {vr(Kl,4)}, v{vA} offset0:{kt//512} offset1:{kt//512+1}")
    a(f"ds_read_b64 {vr(Kl+4,2)}, v{vB} offset:{kt}")
    if not first:
        a(f"v_mfma_f32_32x32x16_bf16 {vr(vO,16)}, {vr(Vp+4,4)}, {vr(vP+4,4)}, {vr(vO,16)}")
    for r in range(0,4): a(f"v_exp_f32 v{Sc+r}, v{Sc+r}")
    a(f"v_mfma_f32_32x32x8_bf16 {vr(Sn,16)}, {vr(Kn+4,2)}, {vr(vQr,2)}, 0")
    for r in range(4,8): a(f"v_exp_f32 v{Sc+r}, v{Sc+r}")
    if i==7:
        a(f"v_add_u32 v{vC}, s28, v{vC}")
    a(f"ds_read_b128 {vr(Vn,4)}, v{vC} offset:{vt}")
    a(f"ds_read_b128 {vr(Vn+4,4)}, v{vC} offset:{vt+768}")
    a(f"v_mfma_f32_32x32x16_bf16 {vr(Sn,16)}, {vr(Kn,4)}, {vr(vQm,4)}, {vr(Sn,16)}")
    for p in range(0,4): a(f"v_cvt_pk_bf16_f32 v{vP+p}, v{Sc+2*p}, v{Sc+2*p+1}")
    for r in range(8,10): a(f"v_exp_f32 v{Sc+r}, v{Sc+r}")
    a(f"v_mfma_f32_32x32x16_bf16 {vr(vO,16)}, {vr(Vc,4)}, {vr(vP,4)}, {vr(vO,16)}")
    for r in range(10,16): a(f"v_exp_f32 v{Sc+r}, v{Sc+r}")
    for p in range(4,8): a(f"v_cvt_pk_bf16_f32 v{vP+p}, v{Sc+2*p}, v{Sc+2*p+1}")

def max16(a, S, dst):
    a(f"v_max3_f32 v{dst}, v{S}, v{S+1}, v{S+2}")
    for r in range(3,15,2):
        a(f"v_max3_f32 v{dst}, v{dst}, v{S+r}, v{S+r+1}")
    a(f"v_max_f32 v{dst}, v{dst}, v{S+15}")

def xhalf(a, src, t0, t1):
    a(f"v_mov_b32 v{t0}, v{src}")
    a(f"v_mov_b32 v{t1}, v{src}")
    a("s_nop 1")
    a(f"v_permlane32_swap_b32 v{t0}, v{t1}")
    a("s_nop 1")

def stamp(a, idx, on):
    if not on: return
    a(f"s_memtime s[{60+4*idx}:{61+4*idx}]")
    a(f"s_memrealtime s[{62+4*idx}:{63+4*idx}]")

def attn_role(a, force_slow=False, prof=False, wait_hook=None):
    stamp(a,0,prof)
    a.c("head/qb decode")
    a("s_and_b32 s20, s2, 7")
    a("s_lshr_b32 s21, s2, 3")
    a("s_and_b32 s22, s21, 3")
    a("s_lshl_b32 s20, s20, 2")
    a("s_add_u32 s20, s20, s22")
    a("s_lshr_b32 s21, s21, 2")
    a("s_mul_i32 s22, s20, 196608")
    a(f"s_add_u32 s22, s22, {WS_KV}")
    srd(a, 8, 4, 5, "s22", 196608)
    a("s_mul_i32 s22, s20, 81920")
    srd(a, 12, 4, 5, "s22", 81920)
    srd(a, 16, 4, 5, WS_O, 2621440)
    a("v_lshrrev_b32 v1, 6, v0")
    a("v_and_b32 v2, 63, v0")
    a("s_nop 0")
    a("v_readfirstlane_b32 s23, v1")
    a("v_and_b32 v3, 31, v2")
    a("v_lshrrev_b32 v1, 5, v2")
    if wait_hook: wait_hook(a)
    a("s_mul_i32 s29, s23, 3072")
    a(f"v_lshl_add_u32 v{vD}, v2, 4, s29")
    a("s_mov_b32 m0, s29")
    a("s_mov_b32 s27, 0")
    a(f"buffer_load_dwordx4 v{vD}, s[8:11], s27 offen sc1 lds")
    a(f"buffer_load_dwordx4 v{vD}, s[8:11], s27 offen offset:1024 sc1 lds")
    a(f"buffer_load_dwordx4 v{vD}, s[8:11], s27 offen offset:2048 sc1 lds")
    a("s_lshl_b32 s30, s21, 8")
    a("s_lshl_b32 s31, s23, 5")
    a("s_add_u32 s30, s30, s31")
    a(f"v_add_u32 v{vT}, s30, v3")
    a(f"v_lshlrev_b32 v{vT+1}, 3, v{vT}")
    a(f"v_lshl_add_u32 v{vT+2}, v1, 14, v{vT+1}")
    a("s_mov_b32 s31, 32768")
    a("s_mov_b32 s35, 65536")
    a(f"buffer_load_dwordx2 {vr(vQm,2)}, v{vT+2}, s[12:15], 0 offen sc1")
    a(f"buffer_load_dwordx2 {vr(vQm+2,2)}, v{vT+2}, s[12:15], s31 offen sc1")
    a(f"buffer_load_dwordx2 {vr(vQr,2)}, v{vT+1}, s[12:15], s35 offen sc1")
    a(f"s_add_u32 s26, s29, {CH}")
    a("s_mov_b32 m0, s26")
    a(f"s_mov_b32 s27, {CH}")
    a(f"buffer_load_dwordx4 v{vD}, s[8:11], s27 offen sc1 lds")
    a(f"buffer_load_dwordx4 v{vD}, s[8:11], s27 offen offset:1024 sc1 lds")
    a(f"buffer_load_dwordx4 v{vD}, s[8:11], s27 offen offset:2048 sc1 lds")
    a(f"v_lshlrev_b32 v{vA}, 3, v3")
    a(f"v_lshl_add_u32 v{vA}, v1, 8, v{vA}")
    a(f"v_lshlrev_b32 v{vB}, 3, v3")
    a(f"v_lshl_add_u32 v{vB}, v1, 8, v{vB}")
    a(f"v_add_u32 v{vB}, 1024, v{vB}")
    a(f"v_min_u32 v{vC}, 23, v3")
    a(f"v_lshlrev_b32 v{vC}, 4, v{vC}")
    a(f"v_mul_u32_u24 v{vT+3}, 384, v1")
    a(f"v_add_u32 v{vC}, v{vC}, v{vT+3}")
    a(f"v_add_u32 v{vC}, 1536, v{vC}")
    a("s_mul_i32 s31, s20, 81920")
    a(f"v_lshlrev_b32 v{vT+4}, 3, v{vT}")
    a(f"v_lshl_add_u32 v{vT+4}, v1, 14, v{vT+4}")
    a(f"v_add_u32 v3, s31, v{vT+4}")
    for r in range(16): a(f"v_mov_b32 v{vO+r}, 0")
    a("s_mov_b32 s32, 0")
    a("s_mov_b32 s33, -1")
    a("s_waitcnt vmcnt(3)")
    a(f"v_cndmask_b32 v{vQr}, v{vQr}, 0, s[32:33]")
    a(f"v_cndmask_b32 v{vQr+1}, v{vQr+1}, 0, s[32:33]")
    a(f"v_mov_b32 v{vQr0}, v{vQr}")
    a(f"v_mov_b32 v{vQr0+1}, v{vQr+1}")
    a("s_barrier")
    a(f"ds_read2st64_b64 {vr(vKf[0],4)}, v{vA} offset0:0 offset1:1")
    a(f"ds_read_b64 {vr(vKf[0]+4,2)}, v{vB}")
    a(f"ds_read2st64_b64 {vr(vKf[1],4)}, v{vA} offset0:6 offset1:7")
    a(f"ds_read_b64 {vr(vKf[1]+4,2)}, v{vB} offset:3072")
    a(f"ds_read_b128 {vr(vVf[0],4)}, v{vC}")
    a(f"ds_read_b128 {vr(vVf[0]+4,4)}, v{vC} offset:768")
    a("s_waitcnt lgkmcnt(0)")
    S0=vS[0]
    a(f"v_mfma_f32_32x32x8_bf16 {vr(S0,16)}, {vr(vKf[0]+4,2)}, {vr(vQr,2)}, 0")
    a(f"v_mfma_f32_32x32x16_bf16 {vr(S0,16)}, {vr(vKf[0],4)}, {vr(vQm,4)}, {vr(S0,16)}")
    a("s_nop 15")
    max16(a, S0, vT)
    xhalf(a, vT, vT+1, vT+2)
    a(f"v_max_f32 v{vT}, v{vT+1}, v{vT+2}")
    a(f"v_sub_f32 v{vT}, 0, v{vT}")
    a(f"v_cvt_pk_bf16_f32 v{vT}, v{vT}, 0")
    a("s_nop 0")
    a(f"v_cndmask_b32 v{vQr}, v{vQr}, v{vT}, s[32:33]")
    a("s_nop 1")
    a(f"v_mfma_f32_32x32x8_bf16 {vr(S0,16)}, {vr(vKf[0]+4,2)}, {vr(vQr,2)}, 0")
    a(f"v_mfma_f32_32x32x16_bf16 {vr(S0,16)}, {vr(vKf[0],4)}, {vr(vQm,4)}, {vr(S0,16)}")
    for r in range(4,8): a(f"v_mov_b32 v{vP+r}, 0")
    for r in range(4,8): a(f"v_mov_b32 v{vVf[1]+r}, 0")
    a("s_mov_b32 s24, 0")
    a("s_mov_b32 s25, 0")
    a(f"s_add_u32 s26, s29, {2*CH}")
    a("s_mov_b32 s34, 0")
    a(f"s_mov_b32 s42, {-2*CH}")
    a(f"s_mov_b32 s43, {CH}")
    a("s_nop 7")
    stamp(a,1,prof)
    a("L_att_loop:")
    a("s_cmp_eq_u32 s34, 2")
    a("s_cselect_b32 s28, s42, s43")
    for i in range(8):
        attn_body(a, i)
    a("s_add_u32 s34, s34, 1")
    a("s_cmp_eq_u32 s34, 3")
    a("s_cselect_b32 s34, 0, s34")
    a("s_add_u32 s35, s34, 2")
    a("s_cmp_ge_u32 s35, 3")
    a("s_cselect_b32 s36, 3, 0")
    a("s_sub_u32 s35, s35, s36")
    a(f"s_mul_i32 s35, s35, {CH}")
    a("s_add_u32 s26, s35, s29")
    a(f"s_add_u32 s25, s25, {CH}")
    a("s_add_u32 s24, s24, 1")
    a("s_cmp_lt_u32 s24, 8")
    a("s_cbranch_scc1 L_att_loop")
    stamp(a,2,prof)
    a("s_nop 1")
    a(f"v_mfma_f32_32x32x16_bf16 {vr(vO,16)}, {vr(vVf[1]+4,4)}, {vr(vP+4,4)}, {vr(vO,16)}")
    a("s_waitcnt lgkmcnt(0)")
    a("s_nop 15")
    xhalf(a, vO+8, vT, vT+1)
    lo = "0x1f800000"; hi="0x5f800000"
    if force_slow: hi="0x3f800000"
    a(f"s_mov_b32 s36, {lo}")
    a(f"s_mov_b32 s37, {hi}")
    a(f"v_cmp_gt_f32 vcc, v{vT+1}, s36" if False else f"v_cmp_lt_f32 vcc, s36, v{vT+1}")
    a(f"v_cmp_gt_f32 s[38:39], s37, v{vT+1}")
    a("s_nop 3")
    a("s_and_b64 s[38:39], s[38:39], vcc")
    a("s_cmp_eq_u64 s[38:39], -1")
    a("s_cbranch_scc1 L_att_fin")
    attn_slow(a)
    a("L_att_fin:")
    a(f"v_rcp_f32 v{vT+1}, v{vT+1}")
    a("s_nop 0")
    for r in range(12): a(f"v_mul_f32 v{vO+r}, v{vO+r}, v{vT+1}")
    for p in range(6): a(f"v_cvt_pk_bf16_f32 v{vP+p}, v{vO+2*p}, v{vO+2*p+1}")
    a("s_mov_b32 s36, 32768")
    a("s_mov_b32 s37, 65536")
    a(f"buffer_store_dwordx2 {vr(vP,2)}, v3, s[16:19], 0 offen sc1")
    a(f"buffer_store_dwordx2 {vr(vP+2,2)}, v3, s[16:19], s36 offen sc1")
    a("s_mov_b64 s[40:41], exec")
    a("s_mov_b32 exec_hi, 0")
    a(f"buffer_store_dwordx2 {vr(vP+4,2)}, v3, s[16:19], s37 offen sc1")
    a("s_mov_b64 exec, s[40:41]")
    tl_mid(a,0)
    def off(a):
        a("s_lshl_b32 s36, s21, 5")
        a("s_add_u32 s36, s36, s20")
        a("s_lshl_b32 s36, s36, 7")
        a(f"s_add_u32 s36, s36, {WS_FL}")
    publish(a, "att", off)
    if prof:
        kv=prof
        a("s_waitcnt vmcnt(0)")
        stamp(a,3,prof)
        a("s_load_dwordx2 s[44:45], s[0:1], 80")
        a("s_waitcnt lgkmcnt(0)")
        a(f"s_add_u32 s44, s44, {WS_TOP}")
        a("s_addc_u32 s45, s45, 0")
        a(f"s_cmp_lg_u32 s2, {prof-1}")
        a("s_cbranch_scc1 L_att_noprof")
        a("s_mov_b32 s46, 256")
        a("s_mov_b32 s47, 0x00020000")
        a("s_sub_u32 s64, s64, s60"); a("s_sub_u32 s68, s68, s60"); a("s_sub_u32 s72, s72, s60"); a("s_sub_u32 s74, s74, s62")
        a("v_mov_b32 v10, s64"); a("v_mov_b32 v11, s68"); a("v_mov_b32 v12, s72"); a("v_mov_b32 v13, s74")
        a("s_lshl_b32 s48, s23, 4")
        a("v_mov_b32 v14, s48")
        a("s_mov_b64 exec, 1")
        a("buffer_store_dwordx4 v[10:13], v14, s[44:47], 0 offen")
        a("L_att_noprof:")

def attn_slow(a):
    a.c("slow path: exact running max")
    a("v_and_b32 v2, 63, v0")
    a(f"v_and_b32 v{vT}, 31, v2")
    a("v_lshrrev_b32 v1, 5, v2")
    a(f"v_lshlrev_b32 v{vA}, 3, v{vT}")
    a(f"v_lshl_add_u32 v{vA}, v1, 8, v{vA}")
    a(f"v_lshlrev_b32 v{vB}, 3, v{vT}")
    a(f"v_lshl_add_u32 v{vB}, v1, 8, v{vB}")
    a(f"v_add_u32 v{vB}, 1024, v{vB}")
    a(f"v_min_u32 v{vC}, 23, v{vT}")
    a(f"v_lshlrev_b32 v{vC}, 4, v{vC}")
    a(f"v_mul_u32_u24 v{vT+3}, 384, v1")
    a(f"v_add_u32 v{vC}, v{vC}, v{vT+3}")
    a(f"v_add_u32 v{vC}, 1536, v{vC}")
    for r in range(16): a(f"v_mov_b32 v{vO+r}, 0")
    a(f"v_mov_b32 v{vM}, 0xff800000")
    a("s_mov_b32 s25, 0")
    S=vS[0]; K=vKf[0]; V=vVf[0]
    a("L_att_slow:")
    a(f"buffer_load_dwordx2 {vr(K,2)}, v{vA}, s[8:11], s25 offen sc1")
    a(f"buffer_load_dwordx2 {vr(K+2,2)}, v{vA}, s[8:11], s25 offen offset:512 sc1")
    a(f"buffer_load_dwordx2 {vr(K+4,2)}, v{vB}, s[8:11], s25 offen sc1")
    a(f"buffer_load_dwordx4 {vr(V,4)}, v{vC}, s[8:11], s25 offen sc1")
    a(f"buffer_load_dwordx4 {vr(V+4,4)}, v{vC}, s[8:11], s25 offen offset:768 sc1")
    a("s_waitcnt vmcnt(0)")
    a(f"v_mfma_f32_32x32x8_bf16 {vr(S,16)}, {vr(K+4,2)}, {vr(vQr0,2)}, 0")
    a(f"v_mfma_f32_32x32x16_bf16 {vr(S,16)}, {vr(K,4)}, {vr(vQm,4)}, {vr(S,16)}")
    a("s_nop 15")
    max16(a, S, vT)
    xhalf(a, vT, vT+1, vT+2)
    a(f"v_max3_f32 v{vT}, v{vT+1}, v{vT+2}, v{vM}")
    a(f"v_sub_f32 v{vAl}, v{vM}, v{vT}")
    a(f"v_exp_f32 v{vAl}, v{vAl}")
    a(f"v_mov_b32 v{vM}, v{vT}")
    for r in range(16): a(f"v_sub_f32 v{S+r}, v{S+r}, v{vM}")
    for r in range(16): a(f"v_exp_f32 v{S+r}, v{S+r}")
    for r in range(16): a(f"v_mul_f32 v{vO+r}, v{vO+r}, v{vAl}")
    for p in range(8): a(f"v_cvt_pk_bf16_f32 v{vP+p}, v{S+2*p}, v{S+2*p+1}")
    a("s_nop 1")
    a(f"v_mfma_f32_32x32x16_bf16 {vr(vO,16)}, {vr(V,4)}, {vr(vP,4)}, {vr(vO,16)}")
    a(f"v_mfma_f32_32x32x16_bf16 {vr(vO,16)}, {vr(V+4,4)}, {vr(vP+4,4)}, {vr(vO,16)}")
    a("s_nop 15")
    a("s_nop 3")
    a("s_add_u32 s25, s25, 3072")
    a("s_cmp_lt_u32 s25, 196608")
    a("s_cbranch_scc1 L_att_slow")
    xhalf(a, vO+8, vT, vT+1)
```

```python
WS_QI = 0
WS_KV = 0x300000
WS_H  = 0x900000
WS_O  = 0xF00000
WS_G  = 0x1180000
WS_END= 0x1400000
WS_RS = 0x1400000
WS_CS = 0x1440000
WS_FL = 0x1480000
WS_TOP= 0x14A0000

class Asm:
    def __init__(self):
        self.lines=[]
    def __call__(self, s=""):
        for l in s.split("\n"):
            l=l.strip()
            if l=="" : continue
            if l.endswith(":") or l.startswith(".") :
                self.lines.append(l)
            else:
                self.lines.append("    "+l)
    def c(self, s):
        self.lines.append("    ; "+s)
    def text(self):
        return "\n".join(self.lines)+"\n"

def vr(b,n):
    return f"v[{b}:{b+n-1}]" if n>1 else f"v{b}"
def sr(b,n):
    return f"s[{b}:{b+n-1}]" if n>1 else f"s{b}"

def srd(a, d, base_lo, base_hi, off, size, tmp=None):
    a(f"s_add_u32 s{d}, s{base_lo}, {off}")
    a(f"s_addc_u32 s{d+1}, s{base_hi}, 0")
    a(f"s_mov_b32 s{d+2}, {size}")
    a(f"s_mov_b32 s{d+3}, 0x00020000")

def kdesc(name, vgpr, sgpr=102, accum=None):
    if accum is None: accum=(vgpr+3)//4*4
    return f""".amdhsa_kernel {name}
  .amdhsa_next_free_vgpr {vgpr}
  .amdhsa_next_free_sgpr {sgpr}
  .amdhsa_accum_offset {accum}
  .amdhsa_group_segment_fixed_size 0
  .amdhsa_kernarg_size 88
  .amdhsa_user_sgpr_count 2
  .amdhsa_user_sgpr_kernarg_segment_ptr 1
  .amdhsa_system_sgpr_workgroup_id_x 1
.end_amdhsa_kernel
"""

def stamp(a, idx, on, base=70):
    if not on: return
    a(f"s_memtime s[{base+2*idx}:{base+1+2*idx}]")

def prof_out(a, on, n, wave_s, tag, base=70):
    if not on: return
    a("s_waitcnt vmcnt(0) lgkmcnt(0)")
    stamp(a, n, on, base)
    a("s_load_dwordx2 s[92:93], s[0:1], 80")
    a("s_waitcnt lgkmcnt(0)")
    a(f"s_add_u32 s92, s92, {WS_TOP}")
    a("s_addc_u32 s93, s93, 0")
    a(f"s_cmp_lg_u32 s2, {on-1}")
    a(f"s_cbranch_scc1 L_{tag}_noprof")
    a("s_mov_b32 s94, 256")
    a("s_mov_b32 s95, 0x00020000")
    for i in range(1,5):
        if i<=n:
            a(f"s_sub_u32 s{base+2*i}, s{base+2*i}, s{base}")
            a(f"v_mov_b32 v{9+i}, s{base+2*i}")
        else:
            a(f"v_mov_b32 v{9+i}, 0")
    a(f"s_lshl_b32 s96, s{wave_s}, 4")
    a("v_mov_b32 v14, s96")
    a("s_mov_b64 exec, 1")
    a("buffer_store_dwordx4 v[10:13], v14, s[92:95], 0 offen")
    a(f"L_{tag}_noprof:")

TL=[False]
def tl_start(a):
    if not TL[0]: return
    a("s_memrealtime s[98:99]")
def tl_end(a, kidx, tag):
    if not TL[0]: return
    a("s_waitcnt vmcnt(0) lgkmcnt(0)")
    a("s_memrealtime s[100:101]")
    a("s_load_dwordx2 s[92:93], s[0:1], 80")
    a("s_waitcnt lgkmcnt(0)")
    a(f"s_add_u32 s92, s92, {WS_TOP+4096+kidx*65536}")
    a("s_addc_u32 s93, s93, 0")
    a("s_mov_b32 s94, 65536")
    a("s_mov_b32 s95, 0x00020000")
    a("s_mov_b64 exec, -1")
    a("v_lshrrev_b32 v14, 6, v0")
    a("s_lshl_b32 s91, s2, 3")
    a("v_add_u32 v14, s91, v14")
    a("v_lshlrev_b32 v14, 4, v14")
    a("v_mov_b32 v10, s98")
    a("v_mov_b32 v11, s100")
    a("v_mov_b32 v12, s76")
    a("v_mov_b32 v13, s78")
    a("s_mov_b64 exec, 1")
    a("buffer_store_dwordx4 v[10:13], v14, s[92:95], 0 offen")
def tl_mid(a, i):
    if not TL[0]: return
    a(f"s_memrealtime s[{76+2*i}:{77+2*i}]")

MAGIC=0x5bd1e995
def publish(a, tag, off_code):
    a("s_waitcnt vmcnt(0) lgkmcnt(0)")
    a("s_barrier")
    a("s_cmp_lg_u32 s23, 0")
    a(f"s_cbranch_scc1 L_{tag}_nof")
    a("s_memrealtime s[82:83]")
    off_code(a)
    a("v_mov_b32 v10, s36")
    a("s_waitcnt lgkmcnt(0)")
    a("v_mov_b32 v12, s82")
    a(f"v_xor_b32 v13, {MAGIC:#x}, v12")
    a("s_mov_b64 s[88:89], exec")
    a("s_mov_b64 exec, 1")
    a("global_store_dwordx2 v10, v[12:13], s[4:5] sc1")
    a("s_mov_b64 exec, s[88:89]")
    a(f"L_{tag}_nof:")
def flag_bad(a, v, t, dst):
    a(f"v_subrev_u32 v{t}, s90, v{v}")
    a(f"v_add_u32 v{t}, -1, v{t}")
    a(f"v_xor_b32 v{v+1}, v{v+1}, v{v}")
    a(f"v_xor_b32 v{v+1}, {MAGIC:#x}, v{v+1}")
    a(f"v_lshrrev_b32 v{t}, 24, v{t}")
    a(f"v_or_b32 v{t}, v{t}, v{v+1}")
    a(f"v_cmp_ne_u32 {dst}, 0, v{t}")

DETF=[0]
def detf(a,i):
    if DETF[0]:
        a("s_memtime s[80:81]")
        a("s_waitcnt lgkmcnt(0)")
        a(f"v_writelane_b32 v127, s80, {i}")
def detf_out(a):
    if not DETF[0]: return
    a(f"s_cmp_lg_u32 s96, {DETF[0]-1}")
    a("s_cbranch_scc1 L_nodetf")
    a("v_readfirstlane_b32 s80, v0")
    a("s_nop 3")
    a("s_cmp_lg_u32 s80, 0")
    a("s_cbranch_scc1 L_nodetf")
    a(f"s_add_u32 s92, s4, {WS_TOP}")
    a("s_addc_u32 s93, s5, 0")
    a("s_mov_b32 s94, 256")
    a("s_mov_b32 s95, 0x00020000")
    a("s_mov_b64 exec, -1")
    a("v_readlane_b32 s80, v127, 0")
    a("v_and_b32 v14, 63, v0")
    a("v_lshlrev_b32 v14, 2, v14")
    a("s_nop 3")
    a("v_subrev_u32 v127, s80, v127")
    a("s_mov_b64 exec, 0xffffffff")
    a("buffer_store_dword v127, v14, s[92:95], 0 offen")
    a("L_nodetf:")
```

```python
from common import *
import struct
def f32(x): return "0x%08x" % struct.unpack("<I", struct.pack("<f", x))[0]
QSCALE=(20**-0.5)*1.4426950408889634
XSTG=16384

class G:
    def __init__(s, tag, NC, RING, base_v):
        s.tag=tag; s.NC=NC; s.RING=RING
        s.WP=64*NC
        s.WSTG=64*s.WP
        s.swz=(NC==4)
        s.WOFF=RING*XSTG
        s.L_ROWA=s.WOFF+RING*s.WSTG; s.L_ROWB=s.L_ROWA+512; s.L_CS=s.L_ROWB+512; s.L_BIAS=s.L_CS+512
        s.L_SCR=s.L_BIAS+512; s.L_EX=s.L_SCR+2048
        s.LDS=s.L_EX+2048
        s.nW=s.WSTG//1024
        s.vH=1; s.vLn=2; s.vL31=3
        s.vDma=4
        s.vB=8
        s.vXa=12
        s.vSt=16
        s.vBias=22
        s.vT=24
        s.vAcc=44
        s.vAf=76
        s.vBf=84
        s.vSL=100
        s.vRS=100
        s.vCSa=108
        s.vSel=112
        s.vE=76
        s.vPR=base_v
        s.vK=s.vT+16
    def nslots(s,j): return 2 if (s.NC==4 or j==0) else 1
    def nwd(s,j):
        return 2 if (s.NC==4 or j==0) else 1
    def nd(s,j): return 2+s.nwd(j)

    def bread(s,a,dst,buf,t,k):
        off=buf*s.WSTG+(16*t)*s.WP
        for half in range(2):
            o=off+half*4*s.WP
            base=s.vB+k
            if o>=32768 and s.RING>2: base=s.vB+2+k; o-=32768
            a(f"ds_read_b64_tr_b16 {vr(dst+2*half,2)}, v{base} offset:{o}")
    def aread(s,a,dst,buf,t):
        a(f"ds_read_b128 {vr(dst,4)}, v{s.vXa+t} offset:{buf*XSTG}")
    def dma_items(s,st,j):
        b=st%s.RING; it=[]
        for q in range(2):
            it.append([f"s_mov_b32 s48, {st*128}", f"s_add_u32 m0, s49, {b*XSTG+q*1024}", "s_nop 0", f"buffer_load_dwordx4 v{s.vDma+2+q}, s[8:11], s48 offen lds"])
        for q in range(s.nwd(j)):
            it.append([f"s_mul_i32 s34, s33, {st}", f"s_add_u32 m0, s{28+q}, {s.WOFF+b*s.WSTG}", "s_nop 0", f"buffer_load_dwordx4 v{s.vDma+q}, s[12:15], s34 offen lds"])
        return it
    def dma(s,a,st,j):
        for it in s.dma_items(st,j):
            for l in it: a(l)

    def lane_setup(s,a):
        T=s.vT
        for q in range(2):
            a(f"s_add_u32 s37, s23, {8*q}")
            a(f"s_min_u32 s37, s37, {s.nW-1}")
            a(f"s_lshl_b32 s{28+q}, s37, 10")
            a(f"v_lshl_add_u32 v{T}, v{s.vLn}, 4, s{28+q}")
            if s.NC==4:
                a(f"v_lshrrev_b32 v{T+1}, 8, v{T}")
                a(f"v_bfe_u32 v{T+2}, v{T}, 4, 4")
                a(f"v_and_b32 v{T+3}, 3, v{T+1}")
                a(f"v_lshlrev_b32 v{T+3}, 2, v{T+3}")
                a(f"v_xor_b32 v{T+2}, v{T+2}, v{T+3}")
                a(f"v_lshlrev_b32 v{T+2}, 4, v{T+2}")
            else:
                a(f"v_lshrrev_b32 v{T+1}, 6, v{T}")
                a(f"v_mul_u32_u24 v{T+1}, 21846, v{T+1}")
                a(f"v_lshrrev_b32 v{T+1}, 16, v{T+1}")
                a(f"v_mul_u32_u24 v{T+2}, 192, v{T+1}")
                a(f"v_sub_u32 v{T+2}, v{T}, v{T+2}")
            a(f"v_mul_lo_u32 v{T+1}, v{T+1}, s26")
            a(f"s_lshl_b32 s37, s27, 1")
            a(f"v_add3_u32 v{s.vDma+q}, v{T+1}, v{T+2}, s37")
        a("s_lshl_b32 s49, s23, 11")
        for q in range(2):
            a(f"s_lshl_b32 s37, s23, 4")
            a(f"s_add_u32 s37, s37, {8*q}")
            a(f"v_lshrrev_b32 v{T}, 3, v{s.vLn}")
            a(f"v_add_u32 v{T}, s37, v{T}")
            a(f"v_bfe_u32 v{T+1}, v{T}, 1, 3")
            a(f"v_and_b32 v{T+2}, 7, v{s.vLn}")
            a(f"v_xor_b32 v{T+1}, v{T+1}, v{T+2}")
            a("s_lshl_b32 s38, s20, 7")
            a(f"v_add_u32 v{T}, s38, v{T}")
            a(f"v_mul_u32_u24 v{T}, 1280, v{T}")
            a(f"v_lshl_add_u32 v{s.vDma+2+q}, v{T+1}, 4, v{T}")
        a("s_lshl_b32 s33, s26, 6")
        a("s_lshl_b32 s37, s25, 1")
        a("s_and_b32 s38, s24, 1")
        if s.NC==3:
            a("s_cmp_eq_u32 s25, 0")
            a("s_cselect_b32 s38, s38, 0")
        a("s_add_u32 s40, s37, s38")
        a("s_xor_b32 s41, s40, 1")
    def setup2(s,a):
        T=s.vT
        a("s_lshl_b32 s37, s24, 5")
        a(f"v_add_u32 v{T}, s37, v{s.vL31}")
        a(f"v_bfe_u32 v{T+1}, v{T}, 1, 3")
        a(f"v_lshlrev_b32 v{T}, 7, v{T}")
        for t in range(4):
            a(f"v_add_u32 v{T+2}, {2*t}, v{s.vH}")
            a(f"v_xor_b32 v{T+2}, v{T+2}, v{T+1}")
            a(f"v_lshl_add_u32 v{s.vXa+t}, v{T+2}, 4, v{T}")
        a(f"v_bfe_u32 v{T}, v{s.vLn}, 2, 2")
        a(f"v_lshl_add_u32 v{T+3}, v{s.vH}, 3, v{T}")
        a(f"v_mul_u32_u24 v{T+3}, {s.WP}, v{T+3}")
        a(f"v_and_b32 v{T+1}, 3, v{s.vLn}")
        a(f"v_lshl_add_u32 v{T+3}, v{T+1}, 3, v{T+3}")
        a(f"v_bfe_u32 v{T+1}, v{s.vLn}, 4, 1")
        a(f"v_lshl_add_u32 v{T+3}, v{T+1}, 5, v{T+3}")
        for k in range(2):
            if s.swz:
                a(f"v_xor_b32 v{T+2}, s{40+k}, v{T}")
                a(f"v_lshl_add_u32 v{s.vB+k}, v{T+2}, 6, v{T+3}")
                a(f"v_add_u32 v{s.vB+k}, {s.WOFF}, v{s.vB+k}")
            else:
                a(f"s_lshl_b32 s37, s{40+k}, 6")
                a(f"s_add_u32 s37, s37, {s.WOFF}")
                a(f"v_add_u32 v{s.vB+k}, s37, v{T+3}")
            a(f"v_add_u32 v{s.vB+2+k}, 32768, v{s.vB+k}")

    def loop(s,a,j,cform,tag):
        nt=s.nslots(j); nd=s.nd(j); R=s.RING
        assert R==2
        def fb(p,k): return s.vBf+8*p+4*k
        for st in range(R): s.dma(a,st,j)
        s.setup2(a)
        T=s.vT
        a(f"v_and_b32 v{T}, 15, v{s.vLn}")
        a(f"v_lshrrev_b32 v{T+1}, 4, v{s.vLn}")
        a(f"v_cmp_eq_u32 vcc, v{T}, v{T+1}")
        a(f"v_mov_b32 v{T+2}, 0x3f803f80")
        a("s_nop 0")
        for r in range(4): a(f"v_cndmask_b32 v{s.vSel+r}, 0, v{T+2}, vcc")
        for r in range(4): a(f"v_mov_b32 v{s.vRS+r}, 0")
        for r in range(4): a(f"v_mov_b32 v{s.vCSa+r}, 0")
        a("s_cmp_lt_u32 s24, 2")
        a("s_cselect_b64 vcc, -1, 0")
        a(f"s_waitcnt vmcnt({nd})")
        a("s_barrier")
        s.aread(a,s.vAf,0,0)
        for k in range(nt): s.bread(a,fb(0,k),0,0,k)
        step=0; pend=[]
        for st in range(10):
            for t in range(4):
                p=step%2
                a("s_waitcnt lgkmcnt(0)")
                if t==3 and st<9:
                    assert not pend
                    a("s_waitcnt vmcnt(0)")
                    a("s_barrier")
                    if st+R<10: pend=s.dma_items(st+R,j)
                if t<3:
                    s.aread(a,s.vAf+4*(1-p),st%R,t+1)
                    for k in range(nt): s.bread(a,fb(1-p,k),st%R,t+1,k)
                elif st<9:
                    s.aread(a,s.vAf+4*(1-p),(st+1)%R,0)
                    for k in range(nt): s.bread(a,fb(1-p,k),(st+1)%R,0,k)
                Af=s.vAf+4*p
                for k in range(nt):
                    acc=s.vAcc+16*k
                    C="0" if step==0 else vr(acc,16)
                    if cform: a(f"v_mfma_f32_32x32x16_bf16 {vr(acc,16)}, {vr(Af,4)}, {vr(fb(p,k),4)}, {C}")
                    else:     a(f"v_mfma_f32_32x32x16_bf16 {vr(acc,16)}, {vr(fb(p,k),4)}, {vr(Af,4)}, {C}")
                    for _ in range(2):
                        if pend:
                            for l in pend.pop(0): a(l)
                    rr=[2*j, 2*j+1] if nt==1 else [2*j+k]
                    for r in rr:
                        t0=s.vRS+4+2*(r&1)
                        a(f"v_lshlrev_b32 v{t0}, 16, v{Af+r}")
                        a(f"v_and_b32 v{t0+1}, 0xffff0000, v{Af+r}")
                        a(f"v_add_f32 v{s.vRS}, v{s.vRS}, v{t0}")
                        a(f"v_add_f32 v{s.vRS+1}, v{s.vRS+1}, v{t0+1}")
                        a(f"v_fmac_f32 v{s.vRS+2}, v{t0}, v{t0}")
                        a(f"v_fmac_f32 v{s.vRS+3}, v{t0+1}, v{t0+1}")
                a(f"s_cbranch_vccz L_{tag}_ns{step}")
                a(f"v_mfma_f32_16x16x32_bf16 {vr(s.vCSa,4)}, {vr(fb(p,0),4)}, {vr(s.vSel,4)}, {vr(s.vCSa,4)}")
                a(f"L_{tag}_ns{step}:")
                step+=1

    def finalize(s,a,mlp):
        T=s.vT; St=s.vSt; tag=s.tag
        a("s_nop 7")
        a(f"v_add_f32 v{St}, v{s.vRS}, v{s.vRS+1}")
        a(f"v_add_f32 v{St+1}, v{s.vRS+2}, v{s.vRS+3}")
        s.xsum(a, St, T, T+1)
        s.xsum(a, St+1, T, T+1)
        a("s_lshl_b32 s37, s25, 10")
        a("s_lshl_b32 s38, s24, 8")
        a(f"s_add_u32 s38, s38, {s.L_EX}")
        a("s_add_u32 s37, s37, s38")
        a(f"v_lshl_add_u32 v{T+2}, v{s.vL31}, 3, s37")
        a(f"ds_write_b64 v{T+2}, {vr(St,2)}")
        a("s_cmp_lt_u32 s24, 2")
        a(f"s_cbranch_scc0 L_{tag}_nocs")
        a(f"s_lshl_b32 s37, s23, 8")
        a(f"s_add_u32 s37, s37, {s.L_SCR}")
        a(f"v_and_b32 v{T}, 15, v{s.vLn}")
        a(f"v_lshrrev_b32 v{T+1}, 4, v{s.vLn}")
        a(f"v_lshlrev_b32 v{T+2}, 6, v{T}")
        a(f"v_lshl_add_u32 v{T+2}, v{T+1}, 4, v{T+2}")
        a(f"v_add_u32 v{T+2}, s37, v{T+2}")
        a(f"v_cmp_gt_u32 vcc, 4, v{T}")
        a("s_and_saveexec_b64 s[54:55], vcc")
        a(f"ds_write_b128 v{T+2}, {vr(s.vCSa,4)}")
        a("s_mov_b64 exec, s[54:55]")
        a(f"v_lshl_add_u32 v{T+2}, v{s.vL31}, 2, s37")
        a("s_waitcnt lgkmcnt(0)")
        a(f"ds_read_b32 v{T}, v{T+2}")
        a(f"ds_read_b32 v{T+1}, v{T+2} offset:128")
        a("s_waitcnt lgkmcnt(0)")
        a(f"v_add_f32 v{St+4}, v{T}, v{T+1}")
        a(f"s_lshl_b32 s37, s40, 7")
        a(f"s_add_u32 s37, s37, {s.L_CS}")
        a(f"v_lshl_add_u32 v{T+6}, v{s.vL31}, 2, s37")
        a(f"ds_write_b32 v{T+6}, v{St+4}")
        if mlp:
            a(f"v_lshlrev_b32 v{s.vBias}, 16, v{s.vBias}")
            a(f"ds_write_b32 v{T+6}, v{s.vBias} offset:512")
        a(f"L_{tag}_nocs:")
        a("s_waitcnt lgkmcnt(0)")
        a("s_barrier")
        a("s_cmp_eq_u32 s25, 0")
        a(f"s_cbranch_scc1 L_{tag}_fin2")
        a(f"v_lshl_add_u32 v{T+2}, v{s.vL31}, 3, s38")
        a(f"ds_read_b64 {vr(T+4,2)}, v{T+2}")
        a("s_waitcnt lgkmcnt(0)")
        a(f"v_add_f32 v{St}, v{St}, v{T+4}")
        a(f"v_add_f32 v{St+1}, v{St+1}, v{T+5}")
        a(f"v_mul_f32 v{s.vSL}, {f32(1.0/640)}, v{St}")
        a(f"v_mul_f32 v{s.vSL+1}, {f32(1.0/640)}, v{St+1}")
        a(f"v_fma_f32 v{s.vSL+1}, -v{s.vSL}, v{s.vSL}, v{s.vSL+1}")
        a(f"v_max_f32 v{s.vSL+1}, 0, v{s.vSL+1}")
        s.rowparams(a, mlp)
        a(f"L_{tag}_fin2:")
        a("s_waitcnt lgkmcnt(0)")
        a("s_barrier")

    def xsum(s,a,src,t0,t1):
        a(f"v_mov_b32 v{t0}, v{src}")
        a(f"v_mov_b32 v{t1}, v{src}")
        a("s_nop 1")
        a(f"v_permlane32_swap_b32 v{t0}, v{t1}")
        a("s_nop 1")
        a(f"v_add_f32 v{src}, v{t0}, v{t1}")
    def bfr(s,a,v):
        a(f"v_cvt_pk_bf16_f32 v{v}, v{v}, v{v}")
        a(f"v_and_b32 v{v}, 0xffff0000, v{v}")

    def rowparams(s,a,mlp):
        T=s.vT; tag=s.tag
        a(f"v_mov_b32 v{T}, v{s.vSL}")
        a(f"v_mov_b32 v{T+1}, v{s.vSL+1}")
        a(f"v_mov_b32 v{T+2}, v{T}"); s.bfr(a,T+2)
        a(f"v_mov_b32 v{T+3}, v{T+1}"); s.bfr(a,T+3)
        a(f"v_add_f32 v{T+3}, {f32(1e-5)}, v{T+3}"); s.bfr(a,T+3)
        a(f"v_sqrt_f32 v{T+3}, v{T+3}"); a("s_nop 0"); s.bfr(a,T+3)
        a(f"v_rcp_f32 v{T+4}, v{T+3}"); a("s_nop 0")
        a(f"v_mul_f32 v{T+5}, v{T+2}, v{T+4}")
        if not mlp:
            a("s_cmp_eq_u32 s22, 0")
            a(f"s_cbranch_scc0 L_{tag}_rs_nq")
            a(f"v_mul_f32 v{T+4}, {f32(QSCALE)}, v{T+4}")
            a(f"v_mul_f32 v{T+5}, {f32(QSCALE)}, v{T+5}")
            a(f"L_{tag}_rs_nq:")
        else:
            a(f"v_sub_f32 v{T+6}, v{T}, v{T+2}")
            a(f"v_mul_f32 v{T+6}, v{T+6}, v{T+4}"); s.bfr(a,T+6)
            a(f"v_mul_f32 v{T+7}, v{T+1}, v{T+4}")
            a(f"v_mul_f32 v{T+7}, v{T+7}, v{T+4}"); s.bfr(a,T+7)
            a(f"v_add_f32 v{T+7}, {f32(1e-5)}, v{T+7}"); s.bfr(a,T+7)
            a(f"v_sqrt_f32 v{T+7}, v{T+7}"); a("s_nop 0"); s.bfr(a,T+7)
            a(f"v_rcp_f32 v{T+7}, v{T+7}"); a("s_nop 0")
            a(f"v_add_f32 v{T+5}, v{T+5}, v{T+6}")
            a(f"v_mul_f32 v{T+5}, v{T+5}, v{T+7}")
            a(f"v_mul_f32 v{T+4}, v{T+4}, v{T+7}")
        a(f"s_lshl_b32 s37, s24, 7")
        a(f"s_add_u32 s37, s37, {s.L_ROWA}")
        a(f"v_lshl_add_u32 v{T+6}, v{s.vL31}, 2, s37")
        a(f"ds_write_b32 v{T+6}, v{T+4}")
        a(f"ds_write_b32 v{T+6}, v{T+5} offset:512")
    def colparams(s,a,mlp):
        T=s.vT
        a(f"v_add_f32 v{s.vSt+4}, v{s.vSL+4}, v{s.vSL+5}")
        for r in range(2,8): a(f"v_add_f32 v{s.vSt+4}, v{s.vSt+4}, v{s.vSL+4+r}")
        s.xsum(a,s.vSt+4,T,T+1)
        a(f"s_lshl_b32 s37, s40, 7")
        a(f"s_add_u32 s37, s37, {s.L_CS}")
        a(f"v_lshl_add_u32 v{T+6}, v{s.vL31}, 2, s37")
        a(f"ds_write_b32 v{T+6}, v{s.vSt+4}")
        if mlp:
            a(f"v_lshlrev_b32 v{s.vBias}, 16, v{s.vBias}")
            a(f"ds_write_b32 v{T+6}, v{s.vBias} offset:512")
    def statloads(s,a,j,csoff,cspitch,sc):
        T=s.vT
        if j==1:
            a("s_lshl_b32 s37, s20, 7")
            a("s_lshl_b32 s38, s24, 5")
            a("s_add_u32 s37, s37, s38")
            a("s_lshl_b32 s37, s37, 7")
            a(f"v_lshlrev_b32 v{T}, 7, v{s.vL31}")
            a(f"buffer_load_dwordx4 {vr(s.vSL,4)}, v{T}, s[84:87], s37 offen{sc}")
        a("s_lshl_b32 s38, s40, 7")
        a(f"s_add_u32 s37, {csoff}, s38")
        a(f"v_lshlrev_b32 v{T+1}, 2, v{s.vL31}")
        a(f"v_mul_u32_u24 v{T+2}, {8*cspitch}, v{s.vH}")
        a(f"v_add_u32 v{T+1}, v{T+1}, v{T+2}")
        for r in range(8):
            a(f"buffer_load_dword v{s.vSL+4+r}, v{T+1}, s[84:87], s37 offen{sc}")
            if r<7: a(f"s_add_u32 s37, s37, {cspitch}")

    def gelu_pair(s,a,u,t):
        a(f"v_pk_mul_f32 {vr(t,2)}, {vr(u,2)}, {vr(u,2)}")
        a(f"v_pk_fma_f32 {vr(t,2)}, {vr(t,2)}, s[50:51], {vr(s.vK,2)}")
        a(f"v_pk_mul_f32 {vr(t,2)}, {vr(t,2)}, {vr(u,2)}")
        a(f"v_exp_f32 v{t}, v{t}")
        a(f"v_exp_f32 v{t+1}, v{t+1}")
        a("s_nop 0")
        a(f"v_pk_add_f32 {vr(t,2)}, {vr(t,2)}, 1.0 op_sel_hi:[1,0]")
        a(f"v_rcp_f32 v{t}, v{t}")
        a(f"v_rcp_f32 v{t+1}, v{t+1}")
        a("s_nop 0")
        a(f"v_pk_mul_f32 {vr(u,2)}, {vr(u,2)}, {vr(t,2)}")

    def epi_ct(s,a,j,typ,sc=""):
        nt=s.nslots(j); T=s.vT; tag=f"L_{s.tag}_e{typ}{j}"
        Al=T; Be=T+2
        a(f"s_lshl_b32 s37, s24, 7")
        a(f"s_add_u32 s37, s37, {s.L_ROWA}")
        a(f"v_lshl_add_u32 v{T+4}, v{s.vL31}, 2, s37")
        a(f"ds_read_b32 v{Al}, v{T+4}")
        a(f"ds_read_b32 v{Be}, v{T+4} offset:512")
        a(f"s_lshl_b32 s38, s20, 7")
        a(f"s_lshl_b32 s39, s24, 5")
        a(f"s_add_u32 s38, s38, s39")
        a(f"v_add_u32 v{T+5}, s38, v{s.vL31}")
        a(f"v_and_b32 v{T+9}, 1, v{s.vLn}")
        if typ==0:
            a(f"v_lshlrev_b32 v{T+6}, 3, v{T+5}")
            a(f"v_lshl_add_u32 v{T+6}, v{s.vH}, 14, v{T+6}")
            a(f"v_mul_u32_u24 v{T+7}, 32760, v{T+9}")
            a(f"v_add_u32 v{T+6}, v{T+6}, v{T+7}")
        elif typ==1:
            a(f"s_lshr_b32 s39, s38, 5")
            a(f"s_mul_i32 s39, s39, 3072")
            a(f"v_and_b32 v{T+6}, 30, v{s.vL31}")
            a(f"v_lshl_add_u32 v{T+6}, v{T+6}, 3, s39")
            a(f"v_lshl_add_u32 v{T+7}, v{T+9}, 1, v{s.vH}")
            a(f"v_mov_b32 v{s.vK}, 0x3f80")
            a(f"v_mov_b32 v{s.vK+1}, 0")
            a(f"v_mov_b32 v{s.vK+2}, 0x3f80")
            a(f"v_mov_b32 v{s.vK+3}, 0")
        else:
            a(f"v_lshlrev_b32 v{T+6}, 3, v{T+5}")
            a(f"v_lshl_add_u32 v{T+6}, v{s.vH}, 14, v{T+6}")
            a(f"v_mul_u32_u24 v{T+7}, 32760, v{T+9}")
            a(f"v_add_u32 v{T+6}, v{T+6}, v{T+7}")
            c1=-2.0*0.7978845608028654*1.4426950408889634
            c2=c1*0.044715
            a(f"s_mov_b32 s50, {f32(c2)}"); a(f"s_mov_b32 s51, {f32(c2)}")
            a(f"v_mov_b32 v{s.vK}, {f32(c1)}"); a(f"v_mov_b32 v{s.vK+1}, {f32(c1)}")
        a(f"v_lshlrev_b32 v{T+8}, 4, v{s.vH}")
        a(f"v_add_u32 v{T+8}, {s.L_CS}, v{T+8}")
        CS=s.vE
        for k in range(nt):
            a(f"s_lshl_b32 s37, s{40+k}, 7")
            a(f"v_add_u32 v{T+9}, s37, v{T+8}")
            for g in range(4): a(f"ds_read_b128 {vr(CS+4*g,4)}, v{T+9} offset:{32*g}")
            if typ==3:
                for g in range(4): a(f"ds_read_b128 {vr(CS+16+4*g,4)}, v{T+9} offset:{512+32*g}")
            a("s_waitcnt lgkmcnt(0)")
            acc=s.vAcc+16*k
            for pr in range(8):
                c=CS+2*pr; u=acc+2*pr
                if typ==3:
                    a(f"v_pk_fma_f32 {vr(c,2)}, {vr(c,2)}, {vr(Be,2)}, {vr(c+16,2)} op_sel_hi:[1,0,1] neg_lo:[0,0,1] neg_hi:[0,0,1]")
                else:
                    a(f"v_pk_mul_f32 {vr(c,2)}, {vr(c,2)}, {vr(Be,2)} op_sel_hi:[1,0]")
                a(f"v_pk_fma_f32 {vr(u,2)}, {vr(u,2)}, {vr(Al,2)}, {vr(c,2)} op_sel_hi:[1,0,1] neg_lo:[0,0,1] neg_hi:[0,0,1]")
            if typ==3:
                for pr in range(8): s.gelu_pair(a, acc+2*pr, T+10+2*(pr%2))
            PK=CS+32
            for pr in range(8): a(f"v_cvt_pk_bf16_f32 v{PK+pr}, v{acc+2*pr}, v{acc+2*pr+1}")
            a("s_mov_b32 vcc_lo, 0xaaaaaaaa")
            a("s_mov_b32 vcc_hi, 0xaaaaaaaa")
            for gp in range(2):
                O=PK+4*gp
                a(f"v_mov_b32_dpp v{T+14}, v{O+2} quad_perm:[1,0,3,2] row_mask:0xf bank_mask:0xf")
                a(f"v_mov_b32_dpp v{T+15}, v{O+3} quad_perm:[1,0,3,2] row_mask:0xf bank_mask:0xf")
                a(f"v_cndmask_b32_dpp v{O+2}, v{O}, v{O+2}, vcc quad_perm:[1,0,3,2] row_mask:0xf bank_mask:0xf")
                a(f"v_cndmask_b32_dpp v{O+3}, v{O+1}, v{O+3}, vcc quad_perm:[1,0,3,2] row_mask:0xf bank_mask:0xf")
                a(f"v_cndmask_b32 v{O}, v{O}, v{T+14}, vcc")
                a(f"v_cndmask_b32 v{O+1}, v{O+1}, v{T+15}, vcc")
            if typ in (0,3):
                a(f"s_lshl_b32 s37, s{40+k}, 3")
                a(f"s_add_u32 s37, s37, s35")
                a(f"s_lshl_b32 s37, s37, 14")
                for gp in range(2):
                    a(f"buffer_store_dwordx4 {vr(PK+4*gp,4)}, v{T+6}, s[16:19], s37 offen{sc}")
                    if gp<1: a(f"s_add_u32 s37, s37, 65536")
            else:
                a(f"s_lshl_b32 s39, s{40+k}, 3")
                a(f"s_add_u32 s37, s35, s39")
                for gp in range(2):
                    a(f"v_add_u32 v{T+10}, s37, v{T+7}")
                    if gp: a(f"v_add_u32 v{T+10}, 4, v{T+10}")
                    a(f"v_mul_u32_u24 v{T+11}, 205, v{T+10}")
                    a(f"v_lshrrev_b32 v{T+11}, 10, v{T+11}")
                    a(f"v_mul_u32_u24 v{T+12}, 5, v{T+11}")
                    a(f"v_sub_u32 v{T+12}, v{T+10}, v{T+12}")
                    a(f"v_mul_u32_u24 v{T+13}, 0x30000, v{T+11}")
                    a(f"v_lshl_add_u32 v{T+13}, v{T+12}, 8, v{T+13}")
                    a(f"v_add_u32 v{T+13}, v{T+13}, v{T+6}")
                    a(f"v_cmp_eq_u32 vcc, 4, v{T+12}")
                    a(f"buffer_store_dwordx4 {vr(PK+4*gp,4)}, v{T+13}, s[16:19], 0 offen{sc}")
                    a("s_and_saveexec_b64 s[54:55], vcc")
                    a(f"s_cbranch_execz {tag}_nc{k}{gp}")
                    a(f"buffer_store_dwordx4 {vr(s.vK,4)}, v{T+13}, s[16:19], 0 offen offset:256{sc}")
                    a(f"{tag}_nc{k}{gp}:")
                    a("s_mov_b64 exec, s[54:55]")
            a("s_nop 1")

    def epi_v(s,a,j,sc=""):
        nt=s.nslots(j); T=s.vT; tag=f"L_{s.tag}_e2{j}"
        AL=s.vE; BE=s.vE+16; P=s.vE+32
        a(f"s_lshl_b32 s37, s24, 7")
        a(f"s_add_u32 s37, s37, {s.L_ROWA}")
        a(f"v_lshl_add_u32 v{T+4}, v{s.vH}, 4, s37")
        for g in range(4):
            a(f"ds_read_b128 {vr(AL+4*g,4)}, v{T+4} offset:{32*g}")
            a(f"ds_read_b128 {vr(BE+4*g,4)}, v{T+4} offset:{512+32*g}")
        a(f"s_lshl_b32 s38, s20, 2")
        a(f"s_add_u32 s38, s38, s24")
        a(f"s_mul_i32 s38, s38, 3072")
        a(f"s_add_u32 s38, s38, 1536")
        a(f"v_mul_u32_u24 v{T+5}, 384, v{s.vH}")
        a(f"v_add_u32 v{T+5}, s38, v{T+5}")
        a(f"v_lshlrev_b32 v{T+8}, 2, v{s.vL31}")
        a(f"v_add_u32 v{T+8}, {s.L_CS}, v{T+8}")
        for k in range(nt):
            a(f"s_lshl_b32 s37, s{40+k}, 7")
            a(f"v_add_u32 v{T+9}, s37, v{T+8}")
            a(f"ds_read_b32 v{T}, v{T+9}")
            a(f"s_lshl_b32 s37, s35, 2")
            a(f"s_lshl_b32 s39, s{40+k}, 5")
            a(f"s_add_u32 s37, s37, s39")
            a(f"v_add_u32 v{T+10}, s37, v{s.vL31}")
            a(f"v_mul_u32_u24 v{T+11}, 3277, v{T+10}")
            a(f"v_lshrrev_b32 v{T+11}, 16, v{T+11}")
            a(f"v_mul_u32_u24 v{T+12}, 20, v{T+11}")
            a(f"v_sub_u32 v{T+12}, v{T+10}, v{T+12}")
            a(f"v_mul_u32_u24 v{T+13}, 0x30000, v{T+11}")
            a(f"v_lshl_add_u32 v{T+13}, v{T+12}, 4, v{T+13}")
            a(f"v_add_u32 v{T+13}, v{T+13}, v{T+5}")
            a("s_waitcnt lgkmcnt(0)")
            acc=s.vAcc+16*k
            for pr in range(8):
                u=acc+2*pr
                a(f"v_pk_mul_f32 {vr(T+2,2)}, {vr(BE+2*pr,2)}, {vr(T,2)} op_sel_hi:[1,0]")
                a(f"v_pk_fma_f32 {vr(u,2)}, {vr(u,2)}, {vr(AL+2*pr,2)}, {vr(T+2,2)} neg_lo:[0,0,1] neg_hi:[0,0,1]")
            for pr in range(8): a(f"v_cvt_pk_bf16_f32 v{P+pr}, v{acc+2*pr}, v{acc+2*pr+1}")
            a(f"buffer_store_dwordx4 {vr(P,4)}, v{T+13}, s[16:19], 0 offen{sc}")
            a(f"buffer_store_dwordx4 {vr(P+4,4)}, v{T+13}, s[16:19], 0 offen offset:768{sc}")
            a(f"v_cmp_eq_u32 vcc, 0, v{T+12}")
            a(f"v_mov_b32 v{T+14}, 0x3f803f80")
            a("s_nop 0")
            for r in range(4): a(f"v_cndmask_b32 v{P+8+r}, 0, v{T+14}, vcc")
            a(f"v_cmp_gt_u32 vcc, 4, v{T+12}")
            a("s_and_saveexec_b64 s[54:55], vcc")
            a(f"s_cbranch_execz {tag}_nc{k}")
            a(f"buffer_store_dwordx4 {vr(P+8,4)}, v{T+13}, s[16:19], 0 offen offset:320{sc}")
            a(f"buffer_store_dwordx4 {vr(P+8,4)}, v{T+13}, s[16:19], 0 offen offset:1088{sc}")
            a(f"{tag}_nc{k}:")
            a("s_mov_b64 exec, s[54:55]")
            a("s_nop 1")


class G2(G):
    def __init__(s, tag, NC):
        G.__init__(s, tag, NC, 4, 0)
        s.BK=32; s.XS=8192
        s.WSTG=32*s.WP
        s.WOFF=4*s.XS
        s.L_ROWA=s.WOFF+4*s.WSTG; s.L_ROWB=s.L_ROWA+512; s.L_CS=s.L_ROWB+512; s.L_BIAS=s.L_CS+512
        s.L_SCR=s.L_BIAS+512; s.L_EX=s.L_SCR+2048
        s.LDS=s.L_EX+2048
        s.nW=s.WSTG//1024
        s.vDma=4; s.vB=6; s.vXa=8; s.vBias=10; s.vK=12; s.vCSa=16; s.vSel=20
        s.vT=24; s.vRS=32; s.vSt=32; s.vSL=38
        s.vAcc=40; s.vF=72; s.vE=72
    def nd(s,j): return 2
    def bread(s,a,dst,buf,t,k):
        off=buf*s.WSTG+(16*t)*s.WP
        for half in range(2):
            a(f"ds_read_b64_tr_b16 {vr(dst+2*half,2)}, v{s.vB+k} offset:{off+half*4*s.WP}")
    def aread(s,a,dst,buf,t):
        a(f"ds_read_b128 {vr(dst,4)}, v{s.vXa+t} offset:{buf*s.XS}")
    def dma_items(s,st,j):
        b=st%4
        return [[f"s_mov_b32 s48, {st*64}", f"s_add_u32 m0, s49, {b*s.XS}", "s_nop 0", f"buffer_load_dwordx4 v{s.vDma+1}, s[8:11], s48 offen lds"],
                [f"s_mul_i32 s34, s33, {st}", f"s_add_u32 m0, s28, {s.WOFF+b*s.WSTG}", "s_nop 0", f"buffer_load_dwordx4 v{s.vDma}, s[12:15], s34 offen lds"]]
    def lane_setup(s,a):
        T=s.vT
        a(f"s_min_u32 s37, s23, {s.nW-1}")
        a(f"s_lshl_b32 s28, s37, 10")
        a(f"v_lshl_add_u32 v{T}, v{s.vLn}, 4, s28")
        if s.NC==4:
            a(f"v_lshrrev_b32 v{T+1}, 8, v{T}")
            a(f"v_bfe_u32 v{T+2}, v{T}, 4, 4")
            a(f"v_and_b32 v{T+3}, 3, v{T+1}")
            a(f"v_lshlrev_b32 v{T+3}, 2, v{T+3}")
            a(f"v_xor_b32 v{T+2}, v{T+2}, v{T+3}")
            a(f"v_lshlrev_b32 v{T+2}, 4, v{T+2}")
        else:
            a(f"v_lshrrev_b32 v{T+1}, 6, v{T}")
            a(f"v_mul_u32_u24 v{T+1}, 21846, v{T+1}")
            a(f"v_lshrrev_b32 v{T+1}, 16, v{T+1}")
            a(f"v_mul_u32_u24 v{T+2}, 192, v{T+1}")
            a(f"v_sub_u32 v{T+2}, v{T}, v{T+2}")
        a(f"v_mul_lo_u32 v{T+1}, v{T+1}, s26")
        a(f"s_lshl_b32 s37, s27, 1")
        a(f"v_add3_u32 v{s.vDma}, v{T+1}, v{T+2}, s37")
        a("s_lshl_b32 s49, s23, 10")
        a(f"s_lshl_b32 s37, s23, 4")
        a(f"v_lshrrev_b32 v{T}, 2, v{s.vLn}")
        a(f"v_add_u32 v{T}, s37, v{T}")
        a(f"v_bfe_u32 v{T+1}, v{T}, 2, 2")
        a(f"v_and_b32 v{T+2}, 3, v{s.vLn}")
        a(f"v_xor_b32 v{T+1}, v{T+1}, v{T+2}")
        a("s_lshl_b32 s38, s20, 7")
        a(f"v_add_u32 v{T}, s38, v{T}")
        a(f"v_mul_u32_u24 v{T}, 1280, v{T}")
        a(f"v_lshl_add_u32 v{s.vDma+1}, v{T+1}, 4, v{T}")
        a("s_lshl_b32 s33, s26, 5")
        a("s_lshl_b32 s37, s25, 1")
        a("s_and_b32 s38, s24, 1")
        if s.NC==3:
            a("s_cmp_eq_u32 s25, 0")
            a("s_cselect_b32 s38, s38, 0")
        a("s_add_u32 s40, s37, s38")
        a("s_xor_b32 s41, s40, 1")
    def setup2(s,a):
        T=s.vT
        a("s_lshl_b32 s37, s24, 5")
        a(f"v_add_u32 v{T}, s37, v{s.vL31}")
        a(f"v_bfe_u32 v{T+1}, v{T}, 2, 2")
        a(f"v_lshlrev_b32 v{T}, 6, v{T}")
        for t in range(2):
            a(f"v_add_u32 v{T+2}, {2*t}, v{s.vH}")
            a(f"v_xor_b32 v{T+2}, v{T+2}, v{T+1}")
            a(f"v_lshl_add_u32 v{s.vXa+t}, v{T+2}, 4, v{T}")
        a(f"v_bfe_u32 v{T}, v{s.vLn}, 2, 2")
        a(f"v_lshl_add_u32 v{T+3}, v{s.vH}, 3, v{T}")
        a(f"v_mul_u32_u24 v{T+3}, {s.WP}, v{T+3}")
        a(f"v_and_b32 v{T+1}, 3, v{s.vLn}")
        a(f"v_lshl_add_u32 v{T+3}, v{T+1}, 3, v{T+3}")
        a(f"v_bfe_u32 v{T+1}, v{s.vLn}, 4, 1")
        a(f"v_lshl_add_u32 v{T+3}, v{T+1}, 5, v{T+3}")
        for k in range(2):
            if s.swz:
                a(f"v_xor_b32 v{T+2}, s{40+k}, v{T}")
                a(f"v_lshl_add_u32 v{s.vB+k}, v{T+2}, 6, v{T+3}")
                a(f"v_add_u32 v{s.vB+k}, {s.WOFF}, v{s.vB+k}")
            else:
                a(f"s_lshl_b32 s37, s{40+k}, 6")
                a(f"s_add_u32 s37, s37, {s.WOFF}")
                a(f"v_add_u32 v{s.vB+k}, s37, v{T+3}")
    def loop(s,a,j,cform,tag):
        nt=s.nslots(j); nd=2; R=4; NST=20
        vF=76
        vF=s.vF
        def fa(p,t): return vF+24*p+4*t
        def fb(p,t,k): return vF+24*p+8+(t*2+k)*4
        def reads(p,st):
            for t in range(2):
                s.aread(a,fa(p,t),st%R,t)
                for k in range(nt): s.bread(a,fb(p,t,k),st%R,t,k)
        detf(a,1)
        for st in range(R): s.dma(a,st,j)
        detf(a,2)
        s.setup2(a)
        T=s.vT
        a(f"v_and_b32 v{T}, 15, v{s.vLn}")
        a(f"v_lshrrev_b32 v{T+1}, 4, v{s.vLn}")
        a(f"v_cmp_eq_u32 vcc, v{T}, v{T+1}")
        a(f"v_mov_b32 v{T+2}, 0x3f803f80")
        a("s_nop 0")
        for r in range(4): a(f"v_cndmask_b32 v{s.vSel+r}, 0, v{T+2}, vcc")
        for r in range(4): a(f"v_mov_b32 v{s.vRS+r}, 0")
        for r in range(4): a(f"v_mov_b32 v{s.vCSa+r}, 0")
        a("s_cmp_lt_u32 s24, 2")
        a("s_cselect_b64 vcc, -1, 0")
        a(f"s_waitcnt vmcnt({(R-1)*nd})")
        a("s_barrier")
        detf(a,3)
        reads(0,0)
        for st in range(NST):
            p=st%2
            pend=[]
            a("s_waitcnt lgkmcnt(0)")
            if st<NST-1:
                infl=max(0,min(R-2, NST-2-st))
                a(f"s_waitcnt vmcnt({infl*nd})")
                a("s_barrier")
                if st in (3,7,11,15): detf(a,4+st//4)
                if st+R<NST: pend=s.dma_items(st+R,j)
                reads(1-p, st+1)
            for t in range(2):
                Af=fa(p,t)
                for k in range(nt):
                    acc=s.vAcc+16*k
                    C="0" if (st==0 and t==0) else vr(acc,16)
                    B=fb(p,t,k)
                    if cform: a(f"v_mfma_f32_32x32x16_bf16 {vr(acc,16)}, {vr(Af,4)}, {vr(B,4)}, {C}")
                    else:     a(f"v_mfma_f32_32x32x16_bf16 {vr(acc,16)}, {vr(B,4)}, {vr(Af,4)}, {C}")
                    if pend:
                        for l in pend.pop(0): a(l)
                    rr=[2*j, 2*j+1] if nt==1 else [2*j+k]
                    for r in rr:
                        t0=s.vRS+4+2*(r&1)
                        a(f"v_lshlrev_b32 v{t0}, 16, v{Af+r}")
                        a(f"v_and_b32 v{t0+1}, 0xffff0000, v{Af+r}")
                        a(f"v_add_f32 v{s.vRS}, v{s.vRS}, v{t0}")
                        a(f"v_add_f32 v{s.vRS+1}, v{s.vRS+1}, v{t0+1}")
                        a(f"v_fmac_f32 v{s.vRS+2}, v{t0}, v{t0}")
                        a(f"v_fmac_f32 v{s.vRS+3}, v{t0+1}, v{t0+1}")
            a(f"s_cbranch_vccz L_{tag}_ns{st}")
            for t in range(2):
                a(f"v_mfma_f32_16x16x32_bf16 {vr(s.vCSa,4)}, {vr(fb(p,t,0),4)}, {vr(s.vSel,4)}, {vr(s.vCSa,4)}")
            a(f"L_{tag}_ns{st}:")
            assert not pend
```

```python
from common import *
import gemm1
gb=gemm1.G2('b1',3)
import struct
def f32(x): return "0x%08x" % struct.unpack("<I", struct.pack("<f", x))[0]
SG=20480
vLn=2; vL15=3; vG=1
vDm=4
vAo=7
vBa=8
vRw=9
vT=10
vAcc=20
vAr=60
vBf=100
vKG=120
L_DEC=61440
PRIO=[1,0]
WITH_B1=[True]

def sig_mul(a, u, t, n):
    for i in range(n): a(f"v_mul_f32 v{t+i}, {f32(-1.4426950408889634)}, v{u+i}")
    for i in range(n): a(f"v_exp_f32 v{t+i}, v{t+i}")
    a("s_nop 0")
    for i in range(n): a(f"v_add_f32 v{t+i}, 1.0, v{t+i}")
    for i in range(n): a(f"v_rcp_f32 v{t+i}, v{t+i}")
    a("s_nop 0")
    for i in range(n): a(f"v_mul_f32 v{u+i}, v{u+i}, v{t+i}")
def rnd(a, u, n):
    for i in range(0,n,2):
        a(f"v_cvt_pk_bf16_f32 v{u+i}, v{u+i}, v{u+i+1}")
        a(f"v_and_b32 v{u+i+1}, 0xffff0000, v{u+i}")
        a(f"v_lshlrev_b32 v{u+i}, 16, v{u+i}")
def unpack(a, dst, src, n):
    for i in range(n):
        a(f"v_lshlrev_b32 v{dst+2*i}, 16, v{src+i}")
        a(f"v_and_b32 v{dst+2*i+1}, 0xffff0000, v{src+i}")

def aload(a, r, s, srdn, sc=""):
    a(f"s_mov_b32 s34, {s*32*16384}")
    a(f"s_add_u32 s35, s34, {4*16384}")
    a(f"buffer_load_dwordx2 {vr(r,2)}, v{vAo}, s[{srdn}:{srdn+3}], s34 offen{sc}")
    a(f"buffer_load_dwordx2 {vr(r+2,2)}, v{vAo}, s[{srdn}:{srdn+3}], s35 offen{sc}")
    a(f"buffer_load_dwordx2 {vr(r+4,2)}, v{vAo}, s[{srdn}:{srdn+3}], s34 offen offset:128{sc}")
    a(f"buffer_load_dwordx2 {vr(r+6,2)}, v{vAo}, s[{srdn}:{srdn+3}], s35 offen offset:128{sc}")
def wdma(a, s, slot, nd, srdn):
    a(f"s_mov_b32 s34, {s*128*1280}")
    for q in range(nd):
        a(f"s_add_u32 m0, s{28+q}, {slot*SG}")
        a("s_nop 0")
        a(f"buffer_load_dwordx4 v{vDm+q}, s[{srdn}:{srdn+3}], s34 offen lds")
def bfr(a, dst, slot):
    for ct in range(5):
        o=slot*SG+ct*32
        a(f"ds_read_b64_tr_b16 {vr(dst+4*ct,2)}, v{vBa} offset:{o}")
        a(f"ds_read_b64_tr_b16 {vr(dst+4*ct+2,2)}, v{vBa} offset:{o+16*160}")
def mm(a, A, B, first):
    for ct in range(5):
        for tt in range(2):
            acc=vAcc+4*(ct*2+tt)
            C="0" if first else vr(acc,4)
            a(f"v_mfma_f32_16x16x32_bf16 {vr(acc,4)}, {vr(B+4*ct,4)}, {vr(A+4*tt,4)}, {C}")

def reduce_write(a):
    a("s_barrier")
    a("s_nop 4")
    for ct in range(5):
        for tt in range(2):
            acc=vAcc+4*(ct*2+tt)
            a(f"ds_write_b128 v{vRw}, {vr(acc,4)} offset:{tt*5120+ct*64}")
    a("s_waitcnt lgkmcnt(0)")
    a("s_barrier")

def item_addr(a, r):
    a(f"v_add_u32 v{vT}, {512*r}, v0")
    a(f"v_min_u32 v{vT}, 639, v{vT}")
    a(f"v_mul_u32_u24 v{vT+1}, 6554, v{vT}")
    a(f"v_lshrrev_b32 v{vT+1}, 16, v{vT+1}")
    a(f"v_mul_u32_u24 v{vT+2}, 10, v{vT+1}")
    a(f"v_sub_u32 v{vT+2}, v{vT}, v{vT+2}")
    a(f"v_bfe_u32 v{vT+6}, v{vT+1}, 1, 2")
    a(f"v_lshlrev_b32 v{vT+7}, 1, v{vT+2}")
    a(f"v_xor_b32 v{vT+7}, v{vT+7}, v{vT+6}")
    a(f"v_mul_u32_u24 v{vT+8}, 320, v{vT+1}")
    a(f"v_lshl_add_u32 v{vT+3}, v{vT+7}, 4, v{vT+8}")
    a(f"v_xor_b32 v{vT+7}, 1, v{vT+7}")
    a(f"v_lshl_add_u32 v{vT+5}, v{vT+7}, 4, v{vT+8}")
    a("s_lshl_b32 s37, s20, 6")
    a(f"v_add_u32 v{vT+4}, s37, v{vT+1}")
    a(f"v_mul_u32_u24 v{vT+4}, 1280, v{vT+4}")
    a(f"v_lshl_add_u32 v{vT+4}, v{vT+2}, 4, v{vT+4}")
    a("s_mul_i32 s37, s21, 160")
    a(f"v_add_u32 v{vT+4}, s37, v{vT+4}")

def item_sum(a):
    P=vAcc
    for kq in range(4):
        a(f"ds_read_b128 {vr(P+8*kq,4)}, v{vT+3} offset:{kq*20480}")
        a(f"ds_read_b128 {vr(P+8*kq+4,4)}, v{vT+5} offset:{kq*20480}")
    a("s_waitcnt lgkmcnt(0)")
    for i in range(8): a(f"v_add_f32 v{P+i}, v{P+i}, v{P+8+i}")
    for i in range(8): a(f"v_add_f32 v{P+16+i}, v{P+16+i}, v{P+24+i}")
    for i in range(8): a(f"v_add_f32 v{P+i}, v{P+i}, v{P+16+i}")
    rnd(a, P, 8)

def setup(a):
    a("s_and_b32 s20, s3, 7")
    a("s_lshl_b32 s20, s20, 2")
    a("s_bfe_u32 s21, s3, 0x20003")
    a("s_add_u32 s20, s20, s21")
    a("s_lshr_b32 s21, s3, 5")
    a(f"v_lshrrev_b32 v{vT}, 6, v0")
    a(f"v_and_b32 v{vLn}, 63, v0")
    a("s_nop 0")
    a(f"v_readfirstlane_b32 s23, v{vT}")
    a(f"v_and_b32 v{vL15}, 15, v{vLn}")
    a(f"v_lshrrev_b32 v{vG}, 4, v{vLn}")
    a("s_and_b32 s24, s23, 1")
    a("s_lshr_b32 s25, s23, 1")
    for q in range(3):
        a(f"s_add_u32 s37, s23, {8*q}")
        a(f"s_min_u32 s37, s37, 19")
        a(f"s_lshl_b32 s{28+q}, s37, 10")
        a(f"v_lshl_add_u32 v{vT}, v{vLn}, 4, s{28+q}")
        a(f"v_lshrrev_b32 v{vT+1}, 5, v{vT}")
        a(f"v_mul_u32_u24 v{vT+1}, 13108, v{vT+1}")
        a(f"v_lshrrev_b32 v{vT+1}, 16, v{vT+1}")
        a(f"v_mul_u32_u24 v{vT+2}, 160, v{vT+1}")
        a(f"v_sub_u32 v{vT+2}, v{vT}, v{vT+2}")
        a(f"v_mul_u32_u24 v{vT+1}, 1280, v{vT+1}")
        a(f"s_mul_i32 s37, s21, 160")
        a(f"v_add3_u32 v{vDm+q}, v{vT+1}, v{vT+2}, s37")
    a("s_lshl_b32 s37, s25, 3")
    a(f"v_add_u32 v{vT}, s37, v{vG}")
    a(f"v_lshlrev_b32 v{vT}, 14, v{vT}")
    a("s_lshl_b32 s37, s20, 6")
    a("s_lshl_b32 s38, s24, 5")
    a("s_add_u32 s37, s37, s38")
    a(f"v_add_u32 v{vT+1}, s37, v{vL15}")
    a(f"v_lshl_add_u32 v{vAo}, v{vT+1}, 3, v{vT}")
    a(f"v_bfe_u32 v{vT}, v{vLn}, 2, 2")
    a(f"v_lshl_add_u32 v{vT}, v{vG}, 2, v{vT}")
    a("s_lshl_b32 s37, s25, 5")
    a(f"v_add_u32 v{vT}, s37, v{vT}")
    a(f"v_mul_u32_u24 v{vT}, 160, v{vT}")
    a(f"v_and_b32 v{vT+1}, 3, v{vLn}")
    a(f"v_lshl_add_u32 v{vBa}, v{vT+1}, 3, v{vT}")
    a("s_mul_i32 s37, s25, 20480")
    a("s_mul_i32 s38, s24, 10240")
    a("s_add_u32 s37, s37, s38")
    a(f"v_bfe_u32 v{vT}, v{vL15}, 1, 2")
    a(f"v_xor_b32 v{vT}, v{vT}, v{vG}")
    a(f"v_mul_u32_u24 v{vT+1}, 320, v{vL15}")
    a(f"v_lshl_add_u32 v{vT}, v{vT}, 4, v{vT+1}")
    a(f"v_add_u32 v{vRw}, s37, v{vT}")

def srds(a):
    a("s_load_dwordx4 s[56:59], s[0:1], 48")
    a("s_load_dwordx2 s[60:61], s[0:1], 16")
    a("s_load_dwordx2 s[62:63], s[0:1], 0")
    a("s_load_dwordx4 s[64:67], s[0:1], 64")
    a("s_waitcnt lgkmcnt(0)")
    srd(a, 8, 4, 5, WS_H, WS_O-WS_H)
    srd(a, 12, 56, 57, 0, 1536*1280)
    srd(a, 16, 64, 65, 0, 2621440)
    srd(a, 44, 58, 59, 0, 1280)
    srd(a, 48, 62, 63, 0, 2621440)
    srd(a, 52, 60, 61, 0, 640*1280)
    srd(a, 68, 4, 5, WS_O, WS_G-WS_O)

def b1_task(a):
    g=gb; T=g.vT
    a("L_b1_task:")
    a("s_load_dwordx2 s[56:57], s[0:1], 0")
    a("s_load_dwordx4 s[60:63], s[0:1], 32")
    a(f"v_lshrrev_b32 v{T}, 6, v0")
    a(f"v_and_b32 v{g.vLn}, 63, v0")
    a("s_nop 0")
    a(f"v_readfirstlane_b32 s23, v{T}")
    a(f"v_and_b32 v{g.vL31}, 31, v{g.vLn}")
    a(f"v_lshrrev_b32 v{g.vH}, 5, v{g.vLn}")
    a("s_and_b32 s24, s23, 3")
    a("s_lshr_b32 s25, s23, 2")
    a("s_mul_i32 s27, s21, 96")
    a("s_mul_i32 s35, s21, 24")
    a("s_mov_b32 s26, 3072")
    g.lane_setup(a)
    a("s_waitcnt lgkmcnt(0)")
    srd(a, 8, 56, 57, 0, 2621440)
    srd(a, 12, 60, 61, 0, 640*3072)
    srd(a, 16, 4, 5, WS_H, WS_O-WS_H)
    srd(a, 44, 62, 63, 0, 3072)
    a("s_lshl_b32 s37, s40, 5")
    a("s_add_u32 s37, s37, s27")
    a(f"v_add_u32 v{T}, s37, v{g.vL31}")
    a(f"v_lshlrev_b32 v{T}, 1, v{T}")
    a(f"buffer_load_ushort v{g.vBias}, v{T}, s[44:47], 0 offen")
    a("s_cmp_eq_u32 s25, 0")
    a("s_cbranch_scc0 L_b1_j1")
    g.loop(a, 0, False, "b1a")
    a("s_branch L_b1_fin")
    a("L_b1_j1:")
    g.loop(a, 1, False, "b1b")
    a("L_b1_fin:")
    g.finalize(a, True)
    a("s_cmp_eq_u32 s25, 0")
    a("s_cbranch_scc0 L_b1_e1")
    g.epi_ct(a, 0, 3, " sc1")
    a("s_branch L_b1_pub")
    a("L_b1_e1:")
    g.epi_ct(a, 1, 3, " sc1")
    a("L_b1_pub:")
    def off(a):
        a("s_lshl_b32 s36, s20, 4")
        a("s_add_u32 s36, s36, s21")
        a("s_lshl_b32 s36, s36, 7")
        a(f"s_add_u32 s36, s36, {WS_FL+32768}")
    publish(a, "b1", off)

def wait_flags(a, tag, base_sgpr_code, nfl, sel, force_help):
    a("s_cmp_lg_u32 s23, 0")
    a(f"s_cbranch_scc1 L_{tag}_wd")
    a(f"s_mov_b32 s{sel}, 0")
    base_sgpr_code(a)
    a(f"v_and_b32 v{vT}, {nfl-1}, v{vLn}")
    a(f"v_lshl_add_u32 v{vT}, v{vT}, 7, s37")
    a("s_mov_b32 s38, 0")
    a(f"L_{tag}_poll:")
    a(f"global_load_dwordx2 v[{vT+2}:{vT+3}], v{vT}, s[4:5] sc1")
    a("s_waitcnt vmcnt(0)")
    flag_bad(a, vT+2, vT+1, "vcc")
    a("s_nop 3")
    a("s_cmp_eq_u64 vcc, 0")
    a(f"s_cbranch_scc1 L_{tag}_pok")
    a("s_sleep 12")
    a("s_add_u32 s38, s38, 1")
    a(f"s_cmp_lt_u32 s38, {2000 if not force_help else 1}")
    a(f"s_cbranch_scc1 L_{tag}_poll")
    a("s_ff1_i32_b64 s39, vcc")
    a(f"s_add_u32 s{sel}, s39, 1")
    a(f"L_{tag}_pok:")
    a(f"v_mov_b32 v{vT}, {L_DEC}")
    a(f"v_mov_b32 v{vT+1}, s{sel}")
    a(f"ds_write_b32 v{vT}, v{vT+1}")
    a(f"L_{tag}_wd:")
    a("s_waitcnt vmcnt(0) lgkmcnt(0)")
    a("s_barrier")
    a(f"v_mov_b32 v{vT}, {L_DEC}")
    a(f"ds_read_b32 v{vT+1}, v{vT}")
    a("s_waitcnt lgkmcnt(0)")
    a(f"v_readfirstlane_b32 s{sel}, v{vT+1}")
    a("s_nop 3")

def mlp_role(a, force_help=False):
    tag="mb"
    a(f"s_setprio {PRIO[0]}")
    if not WITH_B1[0]:
        setup(a); srds(a)
        a("s_branch L_mb_m2go")
    a("s_and_b32 s20, s3, 7")
    a("s_lshl_b32 s20, s20, 1")
    a("s_bfe_u32 s21, s3, 0x10003")
    a("s_add_u32 s20, s20, s21")
    a("s_lshr_b32 s21, s3, 4")
    b1_task(a)
    a("L_mb_m2:")
    setup(a)
    srds(a)
    def hb(a):
        a("s_lshr_b32 s37, s20, 1")
        a("s_lshl_b32 s37, s37, 11")
        a(f"s_add_u32 s37, s37, {WS_FL+32768}")
    wait_flags(a, "mbh", hb, 16, 95, force_help)
    a("s_cmp_eq_u32 s95, 0")
    a("s_cbranch_scc1 L_mb_m2go")
    a("s_barrier")
    a("s_lshr_b32 s20, s20, 1")
    a("s_sub_u32 s21, s95, 1")
    a("s_branch L_b1_task")
    a("L_mb_m2go:")
    a(f"s_setprio {PRIO[1]}")
    tl_mid(a,1)
    A0=vAr; B0=vBf
    NS=12
    a("s_cmp_ge_u32 s23, 4")
    a(f"s_cbranch_scc1 L_{tag}_hi")
    for nd,lab in ((3,"lo"),(2,"hi")):
        if lab=="hi": a(f"L_{tag}_hi:")
        npst=4+nd
        for s in range(3):
            aload(a, A0+8*(s%4), s, 8, " sc1"); wdma(a, s, s%3, nd, 12)
        a(f"s_waitcnt vmcnt({2*npst})")
        a("s_barrier")
        bfr(a, B0, 0)
        for s in range(NS):
            a("s_waitcnt lgkmcnt(0)")
            mm(a, A0+8*(s%4), B0, s==0)
            if s<NS-1:
                a(f"s_waitcnt vmcnt({npst if s+2<NS else 0})")
                a("s_barrier")
                if s+3<NS:
                    aload(a, A0+8*((s+3)%4), s+3, 8, " sc1"); wdma(a, s+3, s%3, nd, 12)
                bfr(a, B0, (s+1)%3)
        if lab=="lo": a(f"s_branch L_{tag}_red")
    a(f"L_{tag}_red:")
    reduce_write(a)
    for r in range(2):
        item_addr(a, r)
        a(f"v_lshl_add_u32 v{vT+6}, v{vT+2}, 4, s37")
        a(f"buffer_load_dwordx4 {vr(vAr,4)}, v{vT+6}, s[44:47], 0 offen")
        item_sum(a)
        a("s_waitcnt vmcnt(0)")
        P=vAcc; U=vAr+8
        unpack(a, U, vAr, 4)
        for i in range(8): a(f"v_add_f32 v{P+i}, v{P+i}, v{U+i}")
        rnd(a, P, 8)
        sig_mul(a, P, U, 8)
        for i in range(4): a(f"v_cvt_pk_bf16_f32 v{vKG+4*r+i}, v{P+2*i}, v{P+2*i+1}")
    a(f"L_{tag}_oproj:")
    tl_mid(a,0)
    a("s_barrier")
    for s_ in range(3): wdma(a, s_, s_, 3, 52)
    for s_ in (3,4):
        a(f"s_mov_b32 s34, {s_*128*1280}")
        for q in range(3):
            a(f"buffer_load_dwordx4 {vr(vAr+4*q,4)}, v{vDm+q}, s[52:55], s34 offen")
    def ab(a):
        a("s_lshr_b32 s37, s20, 2")
        a("s_lshl_b32 s37, s37, 12")
        a(f"s_add_u32 s37, s37, {WS_FL}")
    wait_flags(a, "mba", ab, 32, 97, force_help)
    a("s_cmp_eq_u32 s97, 0")
    a(f"s_cbranch_scc1 L_{tag}_go")
    a("s_barrier")
    a("s_sub_u32 s39, s97, 1")
    a("s_lshr_b32 s40, s39, 2")
    a("s_and_b32 s41, s39, 3")
    a("s_lshl_b32 s41, s41, 3")
    a("s_or_b32 s40, s40, s41")
    a("s_lshr_b32 s41, s20, 2")
    a("s_lshl_b32 s41, s41, 5")
    a("s_or_b32 s2, s40, s41")
    a("s_setprio 0")
    a("s_branch L_k2_att")
    a(f"L_{tag}_resume:")
    a("s_setprio 0")
    setup(a)
    srds(a)
    a(f"s_branch L_{tag}_oproj")
    a(f"L_{tag}_go:")
    for s_ in range(5): aload(a, vAr+8*s_, s_, 68, " sc1")
    bfr(a, vBf, 0)
    a("s_waitcnt vmcnt(16) lgkmcnt(0)")
    mm(a, vAr, vBf, True)
    a("s_barrier")
    wdma(a, 3, 0, 3, 52)
    bfr(a, vBf, 1)
    a("s_waitcnt vmcnt(15) lgkmcnt(0)")
    mm(a, vAr+8, vBf, False)
    a("s_barrier")
    wdma(a, 4, 1, 3, 52)
    bfr(a, vBf, 2)
    a("s_waitcnt vmcnt(14) lgkmcnt(0)")
    mm(a, vAr+16, vBf, False)
    a("s_waitcnt vmcnt(3)")
    a("s_barrier")
    bfr(a, vBf, 0)
    a("s_waitcnt lgkmcnt(0)")
    mm(a, vAr+24, vBf, False)
    a("s_waitcnt vmcnt(0)")
    a("s_barrier")
    bfr(a, vBf, 1)
    item_addr(a, 1)
    a(f"buffer_load_dwordx4 {vr(vAr+4,4)}, v{vT+4}, s[48:51], 0 offen")
    item_addr(a, 0)
    a(f"buffer_load_dwordx4 {vr(vAr,4)}, v{vT+4}, s[48:51], 0 offen")
    a("s_waitcnt lgkmcnt(0)")
    mm(a, vAr+32, vBf, False)
    reduce_write(a)
    for r in range(2):
        if r==1:
            a("s_cmp_ge_u32 s23, 2")
            a(f"s_cbranch_scc1 L_{tag}_done")
            item_addr(a, 1)
        item_sum(a)
        if r==0: a("s_waitcnt vmcnt(0)")
        P=vAcc; U=vAr+8
        unpack(a, U, vKG+4*r, 4)
        for i in range(8): a(f"v_mul_f32 v{P+i}, v{P+i}, v{U+i}")
        rnd(a, P, 8)
        unpack(a, U, vAr+4*r, 4)
        for i in range(8): a(f"v_add_f32 v{P+i}, v{P+i}, v{U+i}")
        for i in range(4): a(f"v_cvt_pk_bf16_f32 v{vBf+4*r+i}, v{P+2*i}, v{P+2*i+1}")
        a(f"buffer_store_dwordx4 {vr(vBf+4*r,4)}, v{vT+4}, s[16:19], 0 offen")
    a(f"L_{tag}_done:")
```

```python
import sys
from common import *
import gemm1, attn, mb
ga=gemm1.G3('qa',4)
L_DEC2=81912
PRIOA=[2]
def qkv_task(a):
    g=ga; T=g.vT
    a("L_qkv_task:")
    a(f"s_setprio {PRIOA[0]}")
    a("s_load_dwordx4 s[56:59], s[0:1], 0")
    a(f"v_lshrrev_b32 v{T}, 6, v0")
    a(f"v_and_b32 v{g.vLn}, 63, v0")
    a("s_nop 0")
    a(f"v_readfirstlane_b32 s23, v{T}")
    a(f"v_and_b32 v{g.vL31}, 31, v{g.vLn}")
    a(f"v_lshrrev_b32 v{g.vH}, 5, v{g.vLn}")
    a("s_and_b32 s24, s23, 3")
    a("s_lshr_b32 s25, s23, 2")
    a("s_mul_i32 s22, s21, 52")
    a("s_lshr_b32 s22, s22, 8")
    a("s_mul_i32 s37, s22, 5")
    a("s_sub_u32 s35, s21, s37")
    a("s_lshl_b32 s35, s35, 5")
    a("s_lshl_b32 s27, s21, 7")
    a("s_mov_b32 s26, 3840")
    g.lane_setup(a)
    a("s_waitcnt lgkmcnt(0)")
    srd(a, 8, 56, 57, 0, 2621440)
    srd(a, 12, 58, 59, 0, 640*3840)
    a("s_cmp_eq_u32 s22, 0")
    a(f"s_mov_b32 s38, {WS_KV}")
    a(f"s_cselect_b32 s37, {WS_QI}, s38")
    a(f"s_mov_b32 s38, {WS_H-WS_KV}")
    a(f"s_cselect_b32 s18, {WS_KV-WS_QI}, s38")
    a("s_add_u32 s16, s4, s37")
    a("s_addc_u32 s17, s5, 0")
    a("s_mov_b32 s19, 0x00020000")
    a("s_cmp_eq_u32 s22, 2")
    a("s_cbranch_scc1 L_qa_cform")
    a("s_cmp_eq_u32 s25, 0")
    a("s_cbranch_scc0 L_qa_t1")
    g.loop(a,0,False,"qaa")
    a("s_branch L_qa_post")
    a("L_qa_t1:")
    g.loop(a,1,False,"qab")
    a("s_branch L_qa_post")
    a("L_qa_cform:")
    a("s_cmp_eq_u32 s25, 0")
    a("s_cbranch_scc0 L_qa_c1")
    g.loop(a,0,True,"qac")
    a("s_branch L_qa_post")
    a("L_qa_c1:")
    g.loop(a,1,True,"qad")
    a("L_qa_post:")
    detf(a,8)
    g.finalize(a, False)
    detf(a,9)
    for typ in range(3):
        a(f"s_cmp_lg_u32 s22, {typ}")
        a(f"s_cbranch_scc1 L_qa_nt{typ}")
        if typ==2: g.epi_v(a,0," sc1")
        else: g.epi_ct(a,0,typ," sc1")
        a("s_branch L_qa_pub")
        a(f"L_qa_nt{typ}:")
    a("L_qa_pub:")
    detf(a,10)
    def off(a):
        a("s_lshl_b32 s36, s21, 4")
        a("s_add_u32 s36, s36, s20")
        a("s_lshl_b32 s36, s36, 7")
        a(f"s_add_u32 s36, s36, {WS_FL+65536}")
    publish(a, "qa", off)
    detf(a,11)
    a("s_setprio 0")

def att_wait(force_help):
    def hook(a):
        V=100
        a("s_cmp_lg_u32 s23, 0")
        a("s_cbranch_scc1 L_aw_wd")
        a("s_mov_b32 s94, 0")
        a("s_mul_i32 s37, s20, 20")
        a("s_lshr_b32 s28, s37, 7")
        a("s_add_u32 s37, s37, 19")
        a("s_lshr_b32 s29, s37, 7")
        a(f"v_bfe_u32 v{V}, v2, 4, 1")
        a(f"v_mov_b32 v{V+1}, s28")
        a(f"v_mov_b32 v{V+2}, s29")
        a(f"v_cmp_eq_u32 vcc, 1, v{V}")
        a("s_nop 1")
        a(f"v_cndmask_b32 v{V+1}, v{V+1}, v{V+2}, vcc")
        a(f"v_lshrrev_b32 v{V+2}, 5, v2")
        a(f"v_mul_u32_u24 v{V+2}, 5, v{V+2}")
        a(f"v_add3_u32 v{V+2}, v{V+2}, v{V+1}, 5")
        a(f"v_and_b32 v{V+3}, 15, v2")
        a(f"v_lshl_add_u32 v{V+4}, v{V+2}, 4, v{V+3}")
        a(f"v_and_b32 v{V+3}, 1, v2")
        a("s_lshl_b32 s37, s21, 1")
        a(f"v_add_u32 v{V+3}, s37, v{V+3}")
        a(f"v_lshl_add_u32 v{V+5}, v{V+1}, 4, v{V+3}")
        a(f"s_mov_b32 s37, {WS_FL+65536}")
        a(f"v_lshl_add_u32 v{V+6}, v{V+4}, 7, s37")
        a(f"v_lshl_add_u32 v{V+7}, v{V+5}, 7, s37")
        a("s_mov_b32 s38, 0")
        a("L_aw_poll:")
        a(f"global_load_dwordx2 v[{V}:{V+1}], v{V+6}, s[4:5] sc1")
        a(f"global_load_dwordx2 v[{V+2}:{V+3}], v{V+7}, s[4:5] sc1")
        a("s_waitcnt vmcnt(0)")
        flag_bad(a, V, V+8, "vcc")
        flag_bad(a, V+2, V+8, "s[30:31]")
        a("s_nop 3")
        a("s_or_b64 s[32:33], vcc, s[30:31]")
        a("s_cmp_eq_u64 s[32:33], 0")
        a("s_cbranch_scc1 L_aw_ok")
        a("s_sleep 6")
        a("s_add_u32 s38, s38, 1")
        a(f"s_cmp_lt_u32 s38, {400 if not force_help else 1}")
        a("s_cbranch_scc1 L_aw_poll")
        a("s_cmp_eq_u64 vcc, 0")
        a("s_cbranch_scc1 L_aw_mq")
        a("s_ff1_i32_b64 s39, vcc")
        a("s_nop 3")
        a(f"v_readlane_b32 s94, v{V+4}, s39")
        a("s_branch L_aw_m2")
        a("L_aw_mq:")
        a("s_ff1_i32_b64 s39, s[30:31]")
        a("s_nop 3")
        a(f"v_readlane_b32 s94, v{V+5}, s39")
        a("L_aw_m2:")
        a("s_nop 3")
        a("s_add_u32 s94, s94, 1")
        a("L_aw_ok:")
        a(f"v_mov_b32 v{V}, {L_DEC2}")
        a(f"v_mov_b32 v{V+1}, s94")
        a(f"ds_write_b32 v{V}, v{V+1}")
        a("L_aw_wd:")
        a("s_waitcnt vmcnt(0) lgkmcnt(0)")
        a("s_barrier")
        a(f"v_mov_b32 v{V}, {L_DEC2}")
        a(f"ds_read_b32 v{V+1}, v{V}")
        a("s_waitcnt lgkmcnt(0)")
        a(f"v_readfirstlane_b32 s94, v{V+1}")
        a("s_nop 3")
        a("s_cmp_eq_u32 s94, 0")
        a("s_cbranch_scc1 L_aw_go")
        a("s_barrier")
        a("s_sub_u32 s94, s94, 1")
        a("s_and_b32 s20, s94, 15")
        a("s_lshr_b32 s21, s94, 4")
        a("s_branch L_qkv_task")
        a("L_aw_go:")
        detf(a,12)
        tl_mid(a,1)
    return hook

def kf(a, force_slow=False, prof=0, force_help=False):
    a(".p2align 8")
    a(".globl kf_kernel")
    a(".type kf_kernel,@function")
    a("kf_kernel:")
    tl_start(a)
    a("s_load_dwordx2 s[4:5], s[0:1], 80")
    a("s_memrealtime s[82:83]")
    a("s_cmp_ge_u32 s2, 512")
    a("s_cbranch_scc1 L_kf_end")
    detf(a,0)
    a("s_mov_b32 s97, 0")
    a("s_mov_b32 s96, s2")
    a("s_waitcnt lgkmcnt(0)")
    a("s_sub_u32 s90, s82, 200")
    a("s_cmp_ge_u32 s2, 256")
    a("s_cbranch_scc1 L_k2_mlp")
    a("s_and_b32 s37, s2, 7")
    a("s_lshr_b32 s38, s2, 3")
    a("s_and_b32 s20, s37, 1")
    a("s_lshl_b32 s20, s20, 3")
    a("s_and_b32 s39, s38, 7")
    a("s_add_u32 s20, s20, s39")
    a("s_lshr_b32 s21, s37, 1")
    a("s_lshl_b32 s21, s21, 2")
    a("s_lshr_b32 s39, s38, 3")
    a("s_add_u32 s21, s21, s39")
    a("s_cmp_eq_u32 s21, 15")
    a("s_cbranch_scc1 L_k2_att")
    if "skipq" in sys.argv:
        a("s_cmp_eq_u32 s2, 37")
        a("s_cbranch_scc1 L_k2_att")
    qkv_task(a)
    a("L_k2_att:")
    attn.attn_role(a, force_slow, prof, att_wait(force_help))
    a("s_cmp_lg_u32 s97, 0")
    a("s_cbranch_scc1 L_mb_resume")
    a("s_branch L_kf_fin")
    a("L_k2_mlp:")
    a("s_sub_u32 s3, s2, 256")
    mb.mlp_role(a, force_help)
    a("L_kf_fin:")
    detf_out(a)
    a("s_mov_b32 s2, s96")
    tl_end(a,0,"kf")
    a("L_kf_end:")
    a("s_endpgm")

NAME="recurrent_scan__softmax_full_mha__mixer_channel_mlp__prompt"
def build(out):
    HDR=open("cdna_kernels/"+NAME+".s.ref").read().split("; Override launch geometry")[0]
    a=Asm()
    txt=HDR+("; @launch kernel=kf_kernel grid=(512,1,1) block=(512,1,1) lds=81920\n" if "final" not in sys.argv else "; @launch grid=(512,1,1) block=(512,1,1) lds=81920\n")
    txt+='.amdgcn_target "amdgcn-amd-amdhsa--gfx950"\n.text\n'
    kf(a, "slow" in sys.argv, 100 if "prof" in sys.argv else 0, "help" in sys.argv)
    txt+=a.text()
    txt+='.section .rodata,"a"\n.p2align 6\n'+kdesc("kf_kernel",128)
    if "final" in sys.argv: txt=txt.replace("kf_kernel", NAME+"_kernel")
    open(out,"w").write(txt)
if __name__=="__main__":
    TL[0]=("tl" in sys.argv)
    for x in sys.argv:
        if x.startswith("det="): DETF[0]=int(x[4:])
        if x=="delayb": mb.DELAYB[0]=1
    for x in sys.argv:
        if x.startswith("prio="): mb.PRIO[:]=[int(c) for c in x[5:7]]; PRIOA[0]=int(x[7])
    build(sys.argv[1])
```

```python
from common import *

vQm=4; vQr=8
vKf=[10,16]
vVf=[22,30]
vS=[40,56]
vP=72
vO=80
vA=96; vB=97; vC=98; vD=99
vT=100
vQr0=108
vM=110; vAl=111
CH=24576
def attn_body(a, i, first=False, last_pv2=True):
    Sc=vS[i%2]; Sn=vS[(i+1)%2]
    Kn=vKf[(i+1)%2]; Kl=vKf[i%2]
    Vc=vVf[i%2]; Vn=vVf[(i+1)%2]; Vp=vVf[(i-1)%2]
    kt=((i+2)%8)*3072; vt=((i+1)%8)*3072
    a("s_waitcnt lgkmcnt(0)")
    if i==6:
        a("s_waitcnt vmcnt(0)")
        a("s_barrier")
        a("s_cmp_ge_u32 s24, 6")
        a("s_cbranch_scc1 L_att_nodma")
        a("s_mov_b32 m0, s26")
        a("s_add_u32 s27, s25, %d" % (2*CH))
        a(f"buffer_load_dwordx4 v{vD}, s[8:11], s27 offen lds")
        a(f"buffer_load_dwordx4 v{vD}, s[8:11], s27 offen offset:1024 lds")
        a(f"buffer_load_dwordx4 v{vD}, s[8:11], s27 offen offset:2048 lds")
        a("L_att_nodma:")
        a(f"v_add_u32 v{vA}, s28, v{vA}")
        a(f"v_add_u32 v{vB}, s28, v{vB}")
    a(f"ds_read2st64_b64 {vr(Kl,4)}, v{vA} offset0:{kt//512} offset1:{kt//512+1}")
    a(f"ds_read_b64 {vr(Kl+4,2)}, v{vB} offset:{kt}")
    if not first:
        a(f"v_mfma_f32_32x32x16_bf16 {vr(vO,16)}, {vr(Vp+4,4)}, {vr(vP+4,4)}, {vr(vO,16)}")
    for r in range(0,4): a(f"v_exp_f32 v{Sc+r}, v{Sc+r}")
    a(f"v_mfma_f32_32x32x8_bf16 {vr(Sn,16)}, {vr(Kn+4,2)}, {vr(vQr,2)}, 0")
    for r in range(4,8): a(f"v_exp_f32 v{Sc+r}, v{Sc+r}")
    if i==7:
        a(f"v_add_u32 v{vC}, s28, v{vC}")
    a(f"ds_read_b128 {vr(Vn,4)}, v{vC} offset:{vt}")
    a(f"ds_read_b128 {vr(Vn+4,4)}, v{vC} offset:{vt+768}")
    a(f"v_mfma_f32_32x32x16_bf16 {vr(Sn,16)}, {vr(Kn,4)}, {vr(vQm,4)}, {vr(Sn,16)}")
    for p in range(0,4): a(f"v_cvt_pk_bf16_f32 v{vP+p}, v{Sc+2*p}, v{Sc+2*p+1}")
    for r in range(8,10): a(f"v_exp_f32 v{Sc+r}, v{Sc+r}")
    a(f"v_mfma_f32_32x32x16_bf16 {vr(vO,16)}, {vr(Vc,4)}, {vr(vP,4)}, {vr(vO,16)}")
    for r in range(10,16): a(f"v_exp_f32 v{Sc+r}, v{Sc+r}")
    for p in range(4,8): a(f"v_cvt_pk_bf16_f32 v{vP+p}, v{Sc+2*p}, v{Sc+2*p+1}")

def max16(a, S, dst):
    a(f"v_max3_f32 v{dst}, v{S}, v{S+1}, v{S+2}")
    for r in range(3,15,2):
        a(f"v_max3_f32 v{dst}, v{dst}, v{S+r}, v{S+r+1}")
    a(f"v_max_f32 v{dst}, v{dst}, v{S+15}")

def xhalf(a, src, t0, t1):
    a(f"v_mov_b32 v{t0}, v{src}")
    a(f"v_mov_b32 v{t1}, v{src}")
    a("s_nop 1")
    a(f"v_permlane32_swap_b32 v{t0}, v{t1}")
    a("s_nop 1")

def stamp(a, idx, on):
    if not on: return
    a(f"s_memtime s[{60+4*idx}:{61+4*idx}]")
    a(f"s_memrealtime s[{62+4*idx}:{63+4*idx}]")

def attn_role(a, force_slow=False, prof=False, wait_hook=None):
    stamp(a,0,prof)
    a.c("head/qb decode")
    a("s_and_b32 s20, s2, 7")
    a("s_lshr_b32 s21, s2, 3")
    a("s_and_b32 s22, s21, 3")
    a("s_lshl_b32 s20, s20, 2")
    a("s_add_u32 s20, s20, s22")
    a("s_lshr_b32 s21, s21, 2")
    a("s_mul_i32 s22, s20, 196608")
    a(f"s_add_u32 s22, s22, {WS_KV}")
    srd(a, 8, 4, 5, "s22", 196608)
    a("s_mul_i32 s22, s20, 81920")
    srd(a, 12, 4, 5, "s22", 81920)
    srd(a, 16, 4, 5, WS_O, 2621440)
    a("v_lshrrev_b32 v1, 6, v0")
    a("v_and_b32 v2, 63, v0")
    a("s_nop 0")
    a("v_readfirstlane_b32 s23, v1")
    a("v_and_b32 v3, 31, v2")
    a("v_lshrrev_b32 v1, 5, v2")
    if wait_hook: wait_hook(a)
    a("s_mul_i32 s29, s23, 3072")
    a(f"v_lshl_add_u32 v{vD}, v2, 4, s29")
    a("s_mov_b32 m0, s29")
    a("s_mov_b32 s27, 0")
    a(f"buffer_load_dwordx4 v{vD}, s[8:11], s27 offen lds")
    a(f"buffer_load_dwordx4 v{vD}, s[8:11], s27 offen offset:1024 lds")
    a(f"buffer_load_dwordx4 v{vD}, s[8:11], s27 offen offset:2048 lds")
    a("s_lshl_b32 s30, s21, 8")
    a("s_lshl_b32 s31, s23, 5")
    a("s_add_u32 s30, s30, s31")
    a(f"v_add_u32 v{vT}, s30, v3")
    a(f"v_lshlrev_b32 v{vT+1}, 3, v{vT}")
    a(f"v_lshl_add_u32 v{vT+2}, v1, 14, v{vT+1}")
    a("s_mov_b32 s31, 32768")
    a("s_mov_b32 s35, 65536")
    a(f"buffer_load_dwordx2 {vr(vQm,2)}, v{vT+2}, s[12:15], 0 offen")
    a(f"buffer_load_dwordx2 {vr(vQm+2,2)}, v{vT+2}, s[12:15], s31 offen")
    a(f"buffer_load_dwordx2 {vr(vQr,2)}, v{vT+1}, s[12:15], s35 offen")
    a(f"s_add_u32 s26, s29, {CH}")
    a("s_mov_b32 m0, s26")
    a(f"s_mov_b32 s27, {CH}")
    a(f"buffer_load_dwordx4 v{vD}, s[8:11], s27 offen lds")
    a(f"buffer_load_dwordx4 v{vD}, s[8:11], s27 offen offset:1024 lds")
    a(f"buffer_load_dwordx4 v{vD}, s[8:11], s27 offen offset:2048 lds")
    a(f"v_lshlrev_b32 v{vA}, 3, v3")
    a(f"v_lshl_add_u32 v{vA}, v1, 8, v{vA}")
    a(f"v_lshlrev_b32 v{vB}, 3, v3")
    a(f"v_lshl_add_u32 v{vB}, v1, 8, v{vB}")
    a(f"v_add_u32 v{vB}, 1024, v{vB}")
    a(f"v_min_u32 v{vC}, 23, v3")
    a(f"v_lshlrev_b32 v{vC}, 4, v{vC}")
    a(f"v_mul_u32_u24 v{vT+3}, 384, v1")
    a(f"v_add_u32 v{vC}, v{vC}, v{vT+3}")
    a(f"v_add_u32 v{vC}, 1536, v{vC}")
    a("s_mul_i32 s31, s20, 81920")
    a(f"v_lshlrev_b32 v{vT+4}, 3, v{vT}")
    a(f"v_lshl_add_u32 v{vT+4}, v1, 14, v{vT+4}")
    a(f"v_add_u32 v3, s31, v{vT+4}")
    for r in range(16): a(f"v_mov_b32 v{vO+r}, 0")
    a("s_mov_b32 s32, 0")
    a("s_mov_b32 s33, -1")
    a("s_waitcnt vmcnt(3)")
    a(f"v_cndmask_b32 v{vQr}, v{vQr}, 0, s[32:33]")
    a(f"v_cndmask_b32 v{vQr+1}, v{vQr+1}, 0, s[32:33]")
    a(f"v_mov_b32 v{vQr0}, v{vQr}")
    a(f"v_mov_b32 v{vQr0+1}, v{vQr+1}")
    a("s_barrier")
    a(f"ds_read2st64_b64 {vr(vKf[0],4)}, v{vA} offset0:0 offset1:1")
    a(f"ds_read_b64 {vr(vKf[0]+4,2)}, v{vB}")
    a(f"ds_read2st64_b64 {vr(vKf[1],4)}, v{vA} offset0:6 offset1:7")
    a(f"ds_read_b64 {vr(vKf[1]+4,2)}, v{vB} offset:3072")
    a(f"ds_read_b128 {vr(vVf[0],4)}, v{vC}")
    a(f"ds_read_b128 {vr(vVf[0]+4,4)}, v{vC} offset:768")
    a("s_waitcnt lgkmcnt(0)")
    S0=vS[0]
    a(f"v_mfma_f32_32x32x8_bf16 {vr(S0,16)}, {vr(vKf[0]+4,2)}, {vr(vQr,2)}, 0")
    a(f"v_mfma_f32_32x32x16_bf16 {vr(S0,16)}, {vr(vKf[0],4)}, {vr(vQm,4)}, {vr(S0,16)}")
    a("s_nop 15")
    max16(a, S0, vT)
    xhalf(a, vT, vT+1, vT+2)
    a(f"v_max_f32 v{vT}, v{vT+1}, v{vT+2}")
    a(f"v_sub_f32 v{vT}, 0, v{vT}")
    a(f"v_cvt_pk_bf16_f32 v{vT}, v{vT}, 0")
    a("s_nop 0")
    a(f"v_cndmask_b32 v{vQr}, v{vQr}, v{vT}, s[32:33]")
    a("s_nop 1")
    a(f"v_mfma_f32_32x32x8_bf16 {vr(S0,16)}, {vr(vKf[0]+4,2)}, {vr(vQr,2)}, 0")
    a(f"v_mfma_f32_32x32x16_bf16 {vr(S0,16)}, {vr(vKf[0],4)}, {vr(vQm,4)}, {vr(S0,16)}")
    for r in range(4,8): a(f"v_mov_b32 v{vP+r}, 0")
    for r in range(4,8): a(f"v_mov_b32 v{vVf[1]+r}, 0")
    a("s_mov_b32 s24, 0")
    a("s_mov_b32 s25, 0")
    a(f"s_add_u32 s26, s29, {2*CH}")
    a("s_mov_b32 s34, 0")
    a(f"s_mov_b32 s42, {-2*CH}")
    a(f"s_mov_b32 s43, {CH}")
    a("s_nop 7")
    stamp(a,1,prof)
    a("L_att_loop:")
    a("s_cmp_eq_u32 s34, 2")
    a("s_cselect_b32 s28, s42, s43")
    for i in range(8):
        attn_body(a, i)
    a("s_add_u32 s34, s34, 1")
    a("s_cmp_eq_u32 s34, 3")
    a("s_cselect_b32 s34, 0, s34")
    a("s_add_u32 s35, s34, 2")
    a("s_cmp_ge_u32 s35, 3")
    a("s_cselect_b32 s36, 3, 0")
    a("s_sub_u32 s35, s35, s36")
    a(f"s_mul_i32 s35, s35, {CH}")
    a("s_add_u32 s26, s35, s29")
    a(f"s_add_u32 s25, s25, {CH}")
    a("s_add_u32 s24, s24, 1")
    a("s_cmp_lt_u32 s24, 8")
    a("s_cbranch_scc1 L_att_loop")
    stamp(a,2,prof)
    a("s_nop 1")
    a(f"v_mfma_f32_32x32x16_bf16 {vr(vO,16)}, {vr(vVf[1]+4,4)}, {vr(vP+4,4)}, {vr(vO,16)}")
    a("s_waitcnt lgkmcnt(0)")
    a("s_nop 15")
    xhalf(a, vO+8, vT, vT+1)
    lo = "0x1f800000"; hi="0x5f800000"
    if force_slow: hi="0x3f800000"
    a(f"s_mov_b32 s36, {lo}")
    a(f"s_mov_b32 s37, {hi}")
    a(f"v_cmp_gt_f32 vcc, v{vT+1}, s36" if False else f"v_cmp_lt_f32 vcc, s36, v{vT+1}")
    a(f"v_cmp_gt_f32 s[38:39], s37, v{vT+1}")
    a("s_nop 3")
    a("s_and_b64 s[38:39], s[38:39], vcc")
    a("s_cmp_eq_u64 s[38:39], -1")
    a("s_cbranch_scc1 L_att_fin")
    attn_slow(a)
    a("L_att_fin:")
    a(f"v_rcp_f32 v{vT+1}, v{vT+1}")
    a("s_nop 0")
    for r in range(12): a(f"v_mul_f32 v{vO+r}, v{vO+r}, v{vT+1}")
    for p in range(6): a(f"v_cvt_pk_bf16_f32 v{vP+p}, v{vO+2*p}, v{vO+2*p+1}")
    a("s_mov_b32 s36, 32768")
    a("s_mov_b32 s37, 65536")
    a(f"buffer_store_dwordx2 {vr(vP,2)}, v3, s[16:19], 0 offen sc1")
    a(f"buffer_store_dwordx2 {vr(vP+2,2)}, v3, s[16:19], s36 offen sc1")
    a("s_mov_b64 s[40:41], exec")
    a("s_mov_b32 exec_hi, 0")
    a(f"buffer_store_dwordx2 {vr(vP+4,2)}, v3, s[16:19], s37 offen sc1")
    a("s_mov_b64 exec, s[40:41]")
    tl_mid(a,0)
    def off(a):
        a("s_lshl_b32 s36, s21, 5")
        a("s_add_u32 s36, s36, s20")
        a("s_lshl_b32 s36, s36, 7")
        a(f"s_add_u32 s36, s36, {WS_FL}")
    publish(a, "att", off)
    if prof:
        kv=prof
        a("s_waitcnt vmcnt(0)")
        stamp(a,3,prof)
        a("s_load_dwordx2 s[44:45], s[0:1], 80")
        a("s_waitcnt lgkmcnt(0)")
        a(f"s_add_u32 s44, s44, {WS_TOP}")
        a("s_addc_u32 s45, s45, 0")
        a(f"s_cmp_lg_u32 s2, {prof-1}")
        a("s_cbranch_scc1 L_att_noprof")
        a("s_mov_b32 s46, 256")
        a("s_mov_b32 s47, 0x00020000")
        a("s_sub_u32 s64, s64, s60"); a("s_sub_u32 s68, s68, s60"); a("s_sub_u32 s72, s72, s60"); a("s_sub_u32 s74, s74, s62")
        a("v_mov_b32 v10, s64"); a("v_mov_b32 v11, s68"); a("v_mov_b32 v12, s72"); a("v_mov_b32 v13, s74")
        a("s_lshl_b32 s48, s23, 4")
        a("v_mov_b32 v14, s48")
        a("s_mov_b64 exec, 1")
        a("buffer_store_dwordx4 v[10:13], v14, s[44:47], 0 offen")
        a("L_att_noprof:")

def attn_slow(a):
    a.c("slow path: exact running max")
    a("v_and_b32 v2, 63, v0")
    a(f"v_and_b32 v{vT}, 31, v2")
    a("v_lshrrev_b32 v1, 5, v2")
    a(f"v_lshlrev_b32 v{vA}, 3, v{vT}")
    a(f"v_lshl_add_u32 v{vA}, v1, 8, v{vA}")
    a(f"v_lshlrev_b32 v{vB}, 3, v{vT}")
    a(f"v_lshl_add_u32 v{vB}, v1, 8, v{vB}")
    a(f"v_add_u32 v{vB}, 1024, v{vB}")
    a(f"v_min_u32 v{vC}, 23, v{vT}")
    a(f"v_lshlrev_b32 v{vC}, 4, v{vC}")
    a(f"v_mul_u32_u24 v{vT+3}, 384, v1")
    a(f"v_add_u32 v{vC}, v{vC}, v{vT+3}")
    a(f"v_add_u32 v{vC}, 1536, v{vC}")
    for r in range(16): a(f"v_mov_b32 v{vO+r}, 0")
    a(f"v_mov_b32 v{vM}, 0xff800000")
    a("s_mov_b32 s25, 0")
    S=vS[0]; K=vKf[0]; V=vVf[0]
    a("L_att_slow:")
    a(f"buffer_load_dwordx2 {vr(K,2)}, v{vA}, s[8:11], s25 offen")
    a(f"buffer_load_dwordx2 {vr(K+2,2)}, v{vA}, s[8:11], s25 offen offset:512")
    a(f"buffer_load_dwordx2 {vr(K+4,2)}, v{vB}, s[8:11], s25 offen")
    a(f"buffer_load_dwordx4 {vr(V,4)}, v{vC}, s[8:11], s25 offen")
    a(f"buffer_load_dwordx4 {vr(V+4,4)}, v{vC}, s[8:11], s25 offen offset:768")
    a("s_waitcnt vmcnt(0)")
    a(f"v_mfma_f32_32x32x8_bf16 {vr(S,16)}, {vr(K+4,2)}, {vr(vQr0,2)}, 0")
    a(f"v_mfma_f32_32x32x16_bf16 {vr(S,16)}, {vr(K,4)}, {vr(vQm,4)}, {vr(S,16)}")
    a("s_nop 15")
    max16(a, S, vT)
    xhalf(a, vT, vT+1, vT+2)
    a(f"v_max3_f32 v{vT}, v{vT+1}, v{vT+2}, v{vM}")
    a(f"v_sub_f32 v{vAl}, v{vM}, v{vT}")
    a(f"v_exp_f32 v{vAl}, v{vAl}")
    a(f"v_mov_b32 v{vM}, v{vT}")
    for r in range(16): a(f"v_sub_f32 v{S+r}, v{S+r}, v{vM}")
    for r in range(16): a(f"v_exp_f32 v{S+r}, v{S+r}")
    for r in range(16): a(f"v_mul_f32 v{vO+r}, v{vO+r}, v{vAl}")
    for p in range(8): a(f"v_cvt_pk_bf16_f32 v{vP+p}, v{S+2*p}, v{S+2*p+1}")
    a("s_nop 1")
    a(f"v_mfma_f32_32x32x16_bf16 {vr(vO,16)}, {vr(V,4)}, {vr(vP,4)}, {vr(vO,16)}")
    a(f"v_mfma_f32_32x32x16_bf16 {vr(vO,16)}, {vr(V+4,4)}, {vr(vP+4,4)}, {vr(vO,16)}")
    a("s_nop 15")
    a("s_nop 3")
    a("s_add_u32 s25, s25, 3072")
    a("s_cmp_lt_u32 s25, 196608")
    a("s_cbranch_scc1 L_att_slow")
    xhalf(a, vO+8, vT, vT+1)
```

```python
from common import *
import struct
def f32(x): return "0x%08x" % struct.unpack("<I", struct.pack("<f", x))[0]
QSCALE=(20**-0.5)*1.4426950408889634
XSTG=16384

class G:
    def __init__(s, tag, NC, RING, base_v):
        s.tag=tag; s.NC=NC; s.RING=RING
        s.WP=64*NC
        s.WSTG=64*s.WP
        s.swz=(NC==4)
        s.WOFF=RING*XSTG
        s.L_ROWA=s.WOFF+RING*s.WSTG; s.L_ROWB=s.L_ROWA+512; s.L_CS=s.L_ROWB+512; s.L_BIAS=s.L_CS+512
        s.L_SCR=s.L_BIAS+512; s.L_EX=s.L_SCR+2048
        s.LDS=s.L_EX+2048
        s.nW=s.WSTG//1024
        s.vH=1; s.vLn=2; s.vL31=3
        s.vDma=4
        s.vB=8
        s.vXa=12
        s.vSt=16
        s.vBias=22
        s.vT=24
        s.vAcc=44
        s.vAf=76
        s.vBf=84
        s.vSL=100
        s.vRS=100
        s.vCSa=108
        s.vSel=112
        s.vE=76
        s.vPR=base_v
        s.vK=s.vT+16
    def nslots(s,j): return 2 if (s.NC==4 or j==0) else 1
    def nwd(s,j):
        return 2 if (s.NC==4 or j==0) else 1
    def nd(s,j): return 2+s.nwd(j)

    def bread(s,a,dst,buf,t,k):
        off=buf*s.WSTG+(16*t)*s.WP
        for half in range(2):
            o=off+half*4*s.WP
            base=s.vB+k
            if o>=32768 and s.RING>2: base=s.vB+2+k; o-=32768
            a(f"ds_read_b64_tr_b16 {vr(dst+2*half,2)}, v{base} offset:{o}")
    def aread(s,a,dst,buf,t):
        a(f"ds_read_b128 {vr(dst,4)}, v{s.vXa+t} offset:{buf*XSTG}")
    def dma_items(s,st,j):
        b=st%s.RING; it=[]
        for q in range(2):
            it.append([f"s_mov_b32 s48, {st*128}", f"s_add_u32 m0, s49, {b*XSTG+q*1024}", "s_nop 0", f"buffer_load_dwordx4 v{s.vDma+2+q}, s[8:11], s48 offen lds"])
        for q in range(s.nwd(j)):
            it.append([f"s_mul_i32 s34, s33, {st}", f"s_add_u32 m0, s{28+q}, {s.WOFF+b*s.WSTG}", "s_nop 0", f"buffer_load_dwordx4 v{s.vDma+q}, s[12:15], s34 offen lds"])
        return it
    def dma(s,a,st,j):
        for it in s.dma_items(st,j):
            for l in it: a(l)

    def lane_setup(s,a):
        T=s.vT
        for q in range(2):
            a(f"s_add_u32 s37, s23, {8*q}")
            a(f"s_min_u32 s37, s37, {s.nW-1}")
            a(f"s_lshl_b32 s{28+q}, s37, 10")
            a(f"v_lshl_add_u32 v{T}, v{s.vLn}, 4, s{28+q}")
            if s.NC==4:
                a(f"v_lshrrev_b32 v{T+1}, 8, v{T}")
                a(f"v_bfe_u32 v{T+2}, v{T}, 4, 4")
                a(f"v_and_b32 v{T+3}, 3, v{T+1}")
                a(f"v_lshlrev_b32 v{T+3}, 2, v{T+3}")
                a(f"v_xor_b32 v{T+2}, v{T+2}, v{T+3}")
                a(f"v_lshlrev_b32 v{T+2}, 4, v{T+2}")
            else:
                a(f"v_lshrrev_b32 v{T+1}, 6, v{T}")
                a(f"v_mul_u32_u24 v{T+1}, 21846, v{T+1}")
                a(f"v_lshrrev_b32 v{T+1}, 16, v{T+1}")
                a(f"v_mul_u32_u24 v{T+2}, 192, v{T+1}")
                a(f"v_sub_u32 v{T+2}, v{T}, v{T+2}")
            a(f"v_mul_lo_u32 v{T+1}, v{T+1}, s26")
            a(f"s_lshl_b32 s37, s27, 1")
            a(f"v_add3_u32 v{s.vDma+q}, v{T+1}, v{T+2}, s37")
        a("s_lshl_b32 s49, s23, 11")
        for q in range(2):
            a(f"s_lshl_b32 s37, s23, 4")
            a(f"s_add_u32 s37, s37, {8*q}")
            a(f"v_lshrrev_b32 v{T}, 3, v{s.vLn}")
            a(f"v_add_u32 v{T}, s37, v{T}")
            a(f"v_bfe_u32 v{T+1}, v{T}, 1, 3")
            a(f"v_and_b32 v{T+2}, 7, v{s.vLn}")
            a(f"v_xor_b32 v{T+1}, v{T+1}, v{T+2}")
            a("s_lshl_b32 s38, s20, 7")
            a(f"v_add_u32 v{T}, s38, v{T}")
            a(f"v_mul_u32_u24 v{T}, 1280, v{T}")
            a(f"v_lshl_add_u32 v{s.vDma+2+q}, v{T+1}, 4, v{T}")
        a("s_lshl_b32 s33, s26, 6")
        a("s_lshl_b32 s37, s25, 1")
        a("s_and_b32 s38, s24, 1")
        if s.NC==3:
            a("s_cmp_eq_u32 s25, 0")
            a("s_cselect_b32 s38, s38, 0")
        a("s_add_u32 s40, s37, s38")
        a("s_xor_b32 s41, s40, 1")
    def setup2(s,a):
        T=s.vT
        a("s_lshl_b32 s37, s24, 5")
        a(f"v_add_u32 v{T}, s37, v{s.vL31}")
        a(f"v_bfe_u32 v{T+1}, v{T}, 1, 3")
        a(f"v_lshlrev_b32 v{T}, 7, v{T}")
        for t in range(4):
            a(f"v_add_u32 v{T+2}, {2*t}, v{s.vH}")
            a(f"v_xor_b32 v{T+2}, v{T+2}, v{T+1}")
            a(f"v_lshl_add_u32 v{s.vXa+t}, v{T+2}, 4, v{T}")
        a(f"v_bfe_u32 v{T}, v{s.vLn}, 2, 2")
        a(f"v_lshl_add_u32 v{T+3}, v{s.vH}, 3, v{T}")
        a(f"v_mul_u32_u24 v{T+3}, {s.WP}, v{T+3}")
        a(f"v_and_b32 v{T+1}, 3, v{s.vLn}")
        a(f"v_lshl_add_u32 v{T+3}, v{T+1}, 3, v{T+3}")
        a(f"v_bfe_u32 v{T+1}, v{s.vLn}, 4, 1")
        a(f"v_lshl_add_u32 v{T+3}, v{T+1}, 5, v{T+3}")
        for k in range(2):
            if s.swz:
                a(f"v_xor_b32 v{T+2}, s{40+k}, v{T}")
                a(f"v_lshl_add_u32 v{s.vB+k}, v{T+2}, 6, v{T+3}")
                a(f"v_add_u32 v{s.vB+k}, {s.WOFF}, v{s.vB+k}")
            else:
                a(f"s_lshl_b32 s37, s{40+k}, 6")
                a(f"s_add_u32 s37, s37, {s.WOFF}")
                a(f"v_add_u32 v{s.vB+k}, s37, v{T+3}")
            a(f"v_add_u32 v{s.vB+2+k}, 32768, v{s.vB+k}")

    def loop(s,a,j,cform,tag):
        nt=s.nslots(j); nd=s.nd(j); R=s.RING
        assert R==2
        def fb(p,k): return s.vBf+8*p+4*k
        for st in range(R): s.dma(a,st,j)
        s.setup2(a)
        T=s.vT
        a(f"v_and_b32 v{T}, 15, v{s.vLn}")
        a(f"v_lshrrev_b32 v{T+1}, 4, v{s.vLn}")
        a(f"v_cmp_eq_u32 vcc, v{T}, v{T+1}")
        a(f"v_mov_b32 v{T+2}, 0x3f803f80")
        a("s_nop 0")
        for r in range(4): a(f"v_cndmask_b32 v{s.vSel+r}, 0, v{T+2}, vcc")
        for r in range(4): a(f"v_mov_b32 v{s.vRS+r}, 0")
        for r in range(4): a(f"v_mov_b32 v{s.vCSa+r}, 0")
        a("s_cmp_lt_u32 s24, 2")
        a("s_cselect_b64 vcc, -1, 0")
        a(f"s_waitcnt vmcnt({nd})")
        a("s_barrier")
        s.aread(a,s.vAf,0,0)
        for k in range(nt): s.bread(a,fb(0,k),0,0,k)
        step=0; pend=[]
        for st in range(10):
            for t in range(4):
                p=step%2
                a("s_waitcnt lgkmcnt(0)")
                if t==3 and st<9:
                    assert not pend
                    a("s_waitcnt vmcnt(0)")
                    a("s_barrier")
                    if st+R<10: pend=s.dma_items(st+R,j)
                if t<3:
                    s.aread(a,s.vAf+4*(1-p),st%R,t+1)
                    for k in range(nt): s.bread(a,fb(1-p,k),st%R,t+1,k)
                elif st<9:
                    s.aread(a,s.vAf+4*(1-p),(st+1)%R,0)
                    for k in range(nt): s.bread(a,fb(1-p,k),(st+1)%R,0,k)
                Af=s.vAf+4*p
                for k in range(nt):
                    acc=s.vAcc+16*k
                    C="0" if step==0 else vr(acc,16)
                    if cform: a(f"v_mfma_f32_32x32x16_bf16 {vr(acc,16)}, {vr(Af,4)}, {vr(fb(p,k),4)}, {C}")
                    else:     a(f"v_mfma_f32_32x32x16_bf16 {vr(acc,16)}, {vr(fb(p,k),4)}, {vr(Af,4)}, {C}")
                    for _ in range(2):
                        if pend:
                            for l in pend.pop(0): a(l)
                    rr=[2*j, 2*j+1] if nt==1 else [2*j+k]
                    for r in rr:
                        t0=s.vRS+4+2*(r&1)
                        a(f"v_lshlrev_b32 v{t0}, 16, v{Af+r}")
                        a(f"v_and_b32 v{t0+1}, 0xffff0000, v{Af+r}")
                        a(f"v_add_f32 v{s.vRS}, v{s.vRS}, v{t0}")
                        a(f"v_add_f32 v{s.vRS+1}, v{s.vRS+1}, v{t0+1}")
                        a(f"v_fmac_f32 v{s.vRS+2}, v{t0}, v{t0}")
                        a(f"v_fmac_f32 v{s.vRS+3}, v{t0+1}, v{t0+1}")
                a(f"s_cbranch_vccz L_{tag}_ns{step}")
                a(f"v_mfma_f32_16x16x32_bf16 {vr(s.vCSa,4)}, {vr(fb(p,0),4)}, {vr(s.vSel,4)}, {vr(s.vCSa,4)}")
                a(f"L_{tag}_ns{step}:")
                step+=1

    def finalize(s,a,mlp):
        T=s.vT; St=s.vSt; tag=s.tag
        a("s_nop 7")
        a(f"v_add_f32 v{St}, v{s.vRS}, v{s.vRS+1}")
        a(f"v_add_f32 v{St+1}, v{s.vRS+2}, v{s.vRS+3}")
        s.xsum(a, St, T, T+1)
        s.xsum(a, St+1, T, T+1)
        a("s_lshl_b32 s37, s25, 10")
        a("s_lshl_b32 s38, s24, 8")
        a(f"s_add_u32 s38, s38, {s.L_EX}")
        a("s_add_u32 s37, s37, s38")
        a(f"v_lshl_add_u32 v{T+2}, v{s.vL31}, 3, s37")
        a(f"ds_write_b64 v{T+2}, {vr(St,2)}")
        a("s_cmp_lt_u32 s24, 2")
        a(f"s_cbranch_scc0 L_{tag}_nocs")
        a(f"s_lshl_b32 s37, s23, 8")
        a(f"s_add_u32 s37, s37, {s.L_SCR}")
        a(f"v_and_b32 v{T}, 15, v{s.vLn}")
        a(f"v_lshrrev_b32 v{T+1}, 4, v{s.vLn}")
        a(f"v_lshlrev_b32 v{T+2}, 6, v{T}")
        a(f"v_lshl_add_u32 v{T+2}, v{T+1}, 4, v{T+2}")
        a(f"v_add_u32 v{T+2}, s37, v{T+2}")
        a(f"v_cmp_gt_u32 vcc, 4, v{T}")
        a("s_and_saveexec_b64 s[54:55], vcc")
        a(f"ds_write_b128 v{T+2}, {vr(s.vCSa,4)}")
        a("s_mov_b64 exec, s[54:55]")
        a(f"v_lshl_add_u32 v{T+2}, v{s.vL31}, 2, s37")
        a("s_waitcnt lgkmcnt(0)")
        a(f"ds_read_b32 v{T}, v{T+2}")
        a(f"ds_read_b32 v{T+1}, v{T+2} offset:128")
        a("s_waitcnt lgkmcnt(0)")
        a(f"v_add_f32 v{St+4}, v{T}, v{T+1}")
        a(f"s_lshl_b32 s37, s40, 7")
        a(f"s_add_u32 s37, s37, {s.L_CS}")
        a(f"v_lshl_add_u32 v{T+6}, v{s.vL31}, 2, s37")
        a(f"ds_write_b32 v{T+6}, v{St+4}")
        if mlp:
            a(f"v_lshlrev_b32 v{s.vBias}, 16, v{s.vBias}")
            a(f"ds_write_b32 v{T+6}, v{s.vBias} offset:512")
        a(f"L_{tag}_nocs:")
        a("s_waitcnt lgkmcnt(0)")
        a("s_barrier")
        a("s_cmp_eq_u32 s25, 0")
        a(f"s_cbranch_scc1 L_{tag}_fin2")
        a(f"v_lshl_add_u32 v{T+2}, v{s.vL31}, 3, s38")
        a(f"ds_read_b64 {vr(T+4,2)}, v{T+2}")
        a("s_waitcnt lgkmcnt(0)")
        a(f"v_add_f32 v{St}, v{St}, v{T+4}")
        a(f"v_add_f32 v{St+1}, v{St+1}, v{T+5}")
        a(f"v_mul_f32 v{s.vSL}, {f32(1.0/640)}, v{St}")
        a(f"v_mul_f32 v{s.vSL+1}, {f32(1.0/640)}, v{St+1}")
        a(f"v_fma_f32 v{s.vSL+1}, -v{s.vSL}, v{s.vSL}, v{s.vSL+1}")
        a(f"v_max_f32 v{s.vSL+1}, 0, v{s.vSL+1}")
        s.rowparams(a, mlp)
        a(f"L_{tag}_fin2:")
        a("s_waitcnt lgkmcnt(0)")
        a("s_barrier")

    def xsum(s,a,src,t0,t1):
        a(f"v_mov_b32 v{t0}, v{src}")
        a(f"v_mov_b32 v{t1}, v{src}")
        a("s_nop 1")
        a(f"v_permlane32_swap_b32 v{t0}, v{t1}")
        a("s_nop 1")
        a(f"v_add_f32 v{src}, v{t0}, v{t1}")
    def bfr(s,a,v):
        a(f"v_cvt_pk_bf16_f32 v{v}, v{v}, v{v}")
        a(f"v_and_b32 v{v}, 0xffff0000, v{v}")

    def rowparams(s,a,mlp):
        T=s.vT; tag=s.tag
        a(f"v_mov_b32 v{T}, v{s.vSL}")
        a(f"v_mov_b32 v{T+1}, v{s.vSL+1}")
        a(f"v_mov_b32 v{T+2}, v{T}"); s.bfr(a,T+2)
        a(f"v_mov_b32 v{T+3}, v{T+1}"); s.bfr(a,T+3)
        a(f"v_add_f32 v{T+3}, {f32(1e-5)}, v{T+3}"); s.bfr(a,T+3)
        a(f"v_sqrt_f32 v{T+3}, v{T+3}"); a("s_nop 0"); s.bfr(a,T+3)
        a(f"v_rcp_f32 v{T+4}, v{T+3}"); a("s_nop 0")
        a(f"v_mul_f32 v{T+5}, v{T+2}, v{T+4}")
        if not mlp:
            a("s_cmp_eq_u32 s22, 0")
            a(f"s_cbranch_scc0 L_{tag}_rs_nq")
            a(f"v_mul_f32 v{T+4}, {f32(QSCALE)}, v{T+4}")
            a(f"v_mul_f32 v{T+5}, {f32(QSCALE)}, v{T+5}")
            a(f"L_{tag}_rs_nq:")
        else:
            a(f"v_sub_f32 v{T+6}, v{T}, v{T+2}")
            a(f"v_mul_f32 v{T+6}, v{T+6}, v{T+4}"); s.bfr(a,T+6)
            a(f"v_mul_f32 v{T+7}, v{T+1}, v{T+4}")
            a(f"v_mul_f32 v{T+7}, v{T+7}, v{T+4}"); s.bfr(a,T+7)
            a(f"v_add_f32 v{T+7}, {f32(1e-5)}, v{T+7}"); s.bfr(a,T+7)
            a(f"v_sqrt_f32 v{T+7}, v{T+7}"); a("s_nop 0"); s.bfr(a,T+7)
            a(f"v_rcp_f32 v{T+7}, v{T+7}"); a("s_nop 0")
            a(f"v_add_f32 v{T+5}, v{T+5}, v{T+6}")
            a(f"v_mul_f32 v{T+5}, v{T+5}, v{T+7}")
            a(f"v_mul_f32 v{T+4}, v{T+4}, v{T+7}")
        a(f"s_lshl_b32 s37, s24, 7")
        a(f"s_add_u32 s37, s37, {s.L_ROWA}")
        a(f"v_lshl_add_u32 v{T+6}, v{s.vL31}, 2, s37")
        a(f"ds_write_b32 v{T+6}, v{T+4}")
        a(f"ds_write_b32 v{T+6}, v{T+5} offset:512")
    def colparams(s,a,mlp):
        T=s.vT
        a(f"v_add_f32 v{s.vSt+4}, v{s.vSL+4}, v{s.vSL+5}")
        for r in range(2,8): a(f"v_add_f32 v{s.vSt+4}, v{s.vSt+4}, v{s.vSL+4+r}")
        s.xsum(a,s.vSt+4,T,T+1)
        a(f"s_lshl_b32 s37, s40, 7")
        a(f"s_add_u32 s37, s37, {s.L_CS}")
        a(f"v_lshl_add_u32 v{T+6}, v{s.vL31}, 2, s37")
        a(f"ds_write_b32 v{T+6}, v{s.vSt+4}")
        if mlp:
            a(f"v_lshlrev_b32 v{s.vBias}, 16, v{s.vBias}")
            a(f"ds_write_b32 v{T+6}, v{s.vBias} offset:512")
    def statloads(s,a,j,csoff,cspitch,sc):
        T=s.vT
        if j==1:
            a("s_lshl_b32 s37, s20, 7")
            a("s_lshl_b32 s38, s24, 5")
            a("s_add_u32 s37, s37, s38")
            a("s_lshl_b32 s37, s37, 7")
            a(f"v_lshlrev_b32 v{T}, 7, v{s.vL31}")
            a(f"buffer_load_dwordx4 {vr(s.vSL,4)}, v{T}, s[84:87], s37 offen{sc}")
        a("s_lshl_b32 s38, s40, 7")
        a(f"s_add_u32 s37, {csoff}, s38")
        a(f"v_lshlrev_b32 v{T+1}, 2, v{s.vL31}")
        a(f"v_mul_u32_u24 v{T+2}, {8*cspitch}, v{s.vH}")
        a(f"v_add_u32 v{T+1}, v{T+1}, v{T+2}")
        for r in range(8):
            a(f"buffer_load_dword v{s.vSL+4+r}, v{T+1}, s[84:87], s37 offen{sc}")
            if r<7: a(f"s_add_u32 s37, s37, {cspitch}")

    def gelu_pair(s,a,u,t):
        a(f"v_pk_mul_f32 {vr(t,2)}, {vr(u,2)}, {vr(u,2)}")
        a(f"v_pk_fma_f32 {vr(t,2)}, {vr(t,2)}, s[50:51], {vr(s.vK,2)}")
        a(f"v_pk_mul_f32 {vr(t,2)}, {vr(t,2)}, {vr(u,2)}")
        a(f"v_exp_f32 v{t}, v{t}")
        a(f"v_exp_f32 v{t+1}, v{t+1}")
        a("s_nop 0")
        a(f"v_pk_add_f32 {vr(t,2)}, {vr(t,2)}, 1.0 op_sel_hi:[1,0]")
        a(f"v_rcp_f32 v{t}, v{t}")
        a(f"v_rcp_f32 v{t+1}, v{t+1}")
        a("s_nop 0")
        a(f"v_pk_mul_f32 {vr(u,2)}, {vr(u,2)}, {vr(t,2)}")

    def epi_ct(s,a,j,typ,sc=""):
        nt=s.nslots(j); T=s.vT; tag=f"L_{s.tag}_e{typ}{j}"
        Al=T; Be=T+2
        a(f"s_lshl_b32 s37, s24, 7")
        a(f"s_add_u32 s37, s37, {s.L_ROWA}")
        a(f"v_lshl_add_u32 v{T+4}, v{s.vL31}, 2, s37")
        a(f"ds_read_b32 v{Al}, v{T+4}")
        a(f"ds_read_b32 v{Be}, v{T+4} offset:512")
        a(f"s_lshl_b32 s38, s20, 7")
        a(f"s_lshl_b32 s39, s24, 5")
        a(f"s_add_u32 s38, s38, s39")
        a(f"v_add_u32 v{T+5}, s38, v{s.vL31}")
        a(f"v_and_b32 v{T+9}, 1, v{s.vLn}")
        if typ==0:
            a(f"v_lshlrev_b32 v{T+6}, 3, v{T+5}")
            a(f"v_lshl_add_u32 v{T+6}, v{s.vH}, 14, v{T+6}")
            a(f"v_mul_u32_u24 v{T+7}, 32760, v{T+9}")
            a(f"v_add_u32 v{T+6}, v{T+6}, v{T+7}")
        elif typ==1:
            a(f"s_lshr_b32 s39, s38, 5")
            a(f"s_mul_i32 s39, s39, 3072")
            a(f"v_and_b32 v{T+6}, 30, v{s.vL31}")
            a(f"v_lshl_add_u32 v{T+6}, v{T+6}, 3, s39")
            a(f"v_lshl_add_u32 v{T+7}, v{T+9}, 1, v{s.vH}")
            a(f"v_mov_b32 v{s.vK}, 0x3f80")
            a(f"v_mov_b32 v{s.vK+1}, 0")
            a(f"v_mov_b32 v{s.vK+2}, 0x3f80")
            a(f"v_mov_b32 v{s.vK+3}, 0")
        else:
            a(f"v_lshlrev_b32 v{T+6}, 3, v{T+5}")
            a(f"v_lshl_add_u32 v{T+6}, v{s.vH}, 14, v{T+6}")
            a(f"v_mul_u32_u24 v{T+7}, 32760, v{T+9}")
            a(f"v_add_u32 v{T+6}, v{T+6}, v{T+7}")
            c1=-2.0*0.7978845608028654*1.4426950408889634
            c2=c1*0.044715
            a(f"s_mov_b32 s50, {f32(c2)}"); a(f"s_mov_b32 s51, {f32(c2)}")
            a(f"v_mov_b32 v{s.vK}, {f32(c1)}"); a(f"v_mov_b32 v{s.vK+1}, {f32(c1)}")
        a(f"v_lshlrev_b32 v{T+8}, 4, v{s.vH}")
        a(f"v_add_u32 v{T+8}, {s.L_CS}, v{T+8}")
        CS=s.vE
        for k in range(nt):
            a(f"s_lshl_b32 s37, s{40+k}, 7")
            a(f"v_add_u32 v{T+9}, s37, v{T+8}")
            for g in range(4): a(f"ds_read_b128 {vr(CS+4*g,4)}, v{T+9} offset:{32*g}")
            if typ==3:
                for g in range(4): a(f"ds_read_b128 {vr(CS+16+4*g,4)}, v{T+9} offset:{512+32*g}")
            a("s_waitcnt lgkmcnt(0)")
            acc=s.vAcc+16*k
            for pr in range(8):
                c=CS+2*pr; u=acc+2*pr
                if typ==3:
                    a(f"v_pk_fma_f32 {vr(c,2)}, {vr(c,2)}, {vr(Be,2)}, {vr(c+16,2)} op_sel_hi:[1,0,1] neg_lo:[0,0,1] neg_hi:[0,0,1]")
                else:
                    a(f"v_pk_mul_f32 {vr(c,2)}, {vr(c,2)}, {vr(Be,2)} op_sel_hi:[1,0]")
                a(f"v_pk_fma_f32 {vr(u,2)}, {vr(u,2)}, {vr(Al,2)}, {vr(c,2)} op_sel_hi:[1,0,1] neg_lo:[0,0,1] neg_hi:[0,0,1]")
            if typ==3:
                for pr in range(8): s.gelu_pair(a, acc+2*pr, T+10+2*(pr%2))
            PK=CS+32
            for pr in range(8): a(f"v_cvt_pk_bf16_f32 v{PK+pr}, v{acc+2*pr}, v{acc+2*pr+1}")
            a("s_mov_b32 vcc_lo, 0xaaaaaaaa")
            a("s_mov_b32 vcc_hi, 0xaaaaaaaa")
            for gp in range(2):
                O=PK+4*gp
                a(f"v_mov_b32_dpp v{T+14}, v{O+2} quad_perm:[1,0,3,2] row_mask:0xf bank_mask:0xf")
                a(f"v_mov_b32_dpp v{T+15}, v{O+3} quad_perm:[1,0,3,2] row_mask:0xf bank_mask:0xf")
                a(f"v_cndmask_b32_dpp v{O+2}, v{O}, v{O+2}, vcc quad_perm:[1,0,3,2] row_mask:0xf bank_mask:0xf")
                a(f"v_cndmask_b32_dpp v{O+3}, v{O+1}, v{O+3}, vcc quad_perm:[1,0,3,2] row_mask:0xf bank_mask:0xf")
                a(f"v_cndmask_b32 v{O}, v{O}, v{T+14}, vcc")
                a(f"v_cndmask_b32 v{O+1}, v{O+1}, v{T+15}, vcc")
            if typ in (0,3):
                a(f"s_lshl_b32 s37, s{40+k}, 3")
                a(f"s_add_u32 s37, s37, s35")
                a(f"s_lshl_b32 s37, s37, 14")
                for gp in range(2):
                    a(f"buffer_store_dwordx4 {vr(PK+4*gp,4)}, v{T+6}, s[16:19], s37 offen{sc}")
                    if gp<1: a(f"s_add_u32 s37, s37, 65536")
            else:
                a(f"s_lshl_b32 s39, s{40+k}, 3")
                a(f"s_add_u32 s37, s35, s39")
                for gp in range(2):
                    a(f"v_add_u32 v{T+10}, s37, v{T+7}")
                    if gp: a(f"v_add_u32 v{T+10}, 4, v{T+10}")
                    a(f"v_mul_u32_u24 v{T+11}, 205, v{T+10}")
                    a(f"v_lshrrev_b32 v{T+11}, 10, v{T+11}")
                    a(f"v_mul_u32_u24 v{T+12}, 5, v{T+11}")
                    a(f"v_sub_u32 v{T+12}, v{T+10}, v{T+12}")
                    a(f"v_mul_u32_u24 v{T+13}, 0x30000, v{T+11}")
                    a(f"v_lshl_add_u32 v{T+13}, v{T+12}, 8, v{T+13}")
                    a(f"v_add_u32 v{T+13}, v{T+13}, v{T+6}")
                    a(f"v_cmp_eq_u32 vcc, 4, v{T+12}")
                    a(f"buffer_store_dwordx4 {vr(PK+4*gp,4)}, v{T+13}, s[16:19], 0 offen{sc}")
                    a("s_and_saveexec_b64 s[54:55], vcc")
                    a(f"s_cbranch_execz {tag}_nc{k}{gp}")
                    a(f"buffer_store_dwordx4 {vr(s.vK,4)}, v{T+13}, s[16:19], 0 offen offset:256{sc}")
                    a(f"{tag}_nc{k}{gp}:")
                    a("s_mov_b64 exec, s[54:55]")
            a("s_nop 1")

    def epi_v(s,a,j,sc=""):
        nt=s.nslots(j); T=s.vT; tag=f"L_{s.tag}_e2{j}"
        AL=s.vE; BE=s.vE+16; P=s.vE+32
        a(f"s_lshl_b32 s37, s24, 7")
        a(f"s_add_u32 s37, s37, {s.L_ROWA}")
        a(f"v_lshl_add_u32 v{T+4}, v{s.vH}, 4, s37")
        for g in range(4):
            a(f"ds_read_b128 {vr(AL+4*g,4)}, v{T+4} offset:{32*g}")
            a(f"ds_read_b128 {vr(BE+4*g,4)}, v{T+4} offset:{512+32*g}")
        a(f"s_lshl_b32 s38, s20, 2")
        a(f"s_add_u32 s38, s38, s24")
        a(f"s_mul_i32 s38, s38, 3072")
        a(f"s_add_u32 s38, s38, 1536")
        a(f"v_mul_u32_u24 v{T+5}, 384, v{s.vH}")
        a(f"v_add_u32 v{T+5}, s38, v{T+5}")
        a(f"v_lshlrev_b32 v{T+8}, 2, v{s.vL31}")
        a(f"v_add_u32 v{T+8}, {s.L_CS}, v{T+8}")
        for k in range(nt):
            a(f"s_lshl_b32 s37, s{40+k}, 7")
            a(f"v_add_u32 v{T+9}, s37, v{T+8}")
            a(f"ds_read_b32 v{T}, v{T+9}")
            a(f"s_lshl_b32 s37, s35, 2")
            a(f"s_lshl_b32 s39, s{40+k}, 5")
            a(f"s_add_u32 s37, s37, s39")
            a(f"v_add_u32 v{T+10}, s37, v{s.vL31}")
            a(f"v_mul_u32_u24 v{T+11}, 3277, v{T+10}")
            a(f"v_lshrrev_b32 v{T+11}, 16, v{T+11}")
            a(f"v_mul_u32_u24 v{T+12}, 20, v{T+11}")
            a(f"v_sub_u32 v{T+12}, v{T+10}, v{T+12}")
            a(f"v_mul_u32_u24 v{T+13}, 0x30000, v{T+11}")
            a(f"v_lshl_add_u32 v{T+13}, v{T+12}, 4, v{T+13}")
            a(f"v_add_u32 v{T+13}, v{T+13}, v{T+5}")
            a("s_waitcnt lgkmcnt(0)")
            acc=s.vAcc+16*k
            for pr in range(8):
                u=acc+2*pr
                a(f"v_pk_mul_f32 {vr(T+2,2)}, {vr(BE+2*pr,2)}, {vr(T,2)} op_sel_hi:[1,0]")
                a(f"v_pk_fma_f32 {vr(u,2)}, {vr(u,2)}, {vr(AL+2*pr,2)}, {vr(T+2,2)} neg_lo:[0,0,1] neg_hi:[0,0,1]")
            for pr in range(8): a(f"v_cvt_pk_bf16_f32 v{P+pr}, v{acc+2*pr}, v{acc+2*pr+1}")
            a(f"buffer_store_dwordx4 {vr(P,4)}, v{T+13}, s[16:19], 0 offen{sc}")
            a(f"buffer_store_dwordx4 {vr(P+4,4)}, v{T+13}, s[16:19], 0 offen offset:768{sc}")
            a(f"v_cmp_eq_u32 vcc, 0, v{T+12}")
            a(f"v_mov_b32 v{T+14}, 0x3f803f80")
            a("s_nop 0")
            for r in range(4): a(f"v_cndmask_b32 v{P+8+r}, 0, v{T+14}, vcc")
            a(f"v_cmp_gt_u32 vcc, 4, v{T+12}")
            a("s_and_saveexec_b64 s[54:55], vcc")
            a(f"s_cbranch_execz {tag}_nc{k}")
            a(f"buffer_store_dwordx4 {vr(P+8,4)}, v{T+13}, s[16:19], 0 offen offset:320{sc}")
            a(f"buffer_store_dwordx4 {vr(P+8,4)}, v{T+13}, s[16:19], 0 offen offset:1088{sc}")
            a(f"{tag}_nc{k}:")
            a("s_mov_b64 exec, s[54:55]")
            a("s_nop 1")


class G2(G):
    def __init__(s, tag, NC):
        G.__init__(s, tag, NC, 4, 0)
        s.BK=32; s.XS=8192
        s.WSTG=32*s.WP
        s.WOFF=4*s.XS
        s.L_ROWA=s.WOFF+4*s.WSTG; s.L_ROWB=s.L_ROWA+512; s.L_CS=s.L_ROWB+512; s.L_BIAS=s.L_CS+512
        s.L_SCR=s.L_BIAS+512; s.L_EX=s.L_SCR+2048
        s.LDS=s.L_EX+2048
        s.nW=s.WSTG//1024
        s.vDma=4; s.vB=6; s.vXa=8; s.vBias=10; s.vK=12; s.vCSa=16; s.vSel=20
        s.vT=24; s.vRS=32; s.vSt=32; s.vSL=38
        s.vAcc=40; s.vF=72; s.vE=72
    def nd(s,j): return 2
    def bread(s,a,dst,buf,t,k):
        off=buf*s.WSTG+(16*t)*s.WP
        for half in range(2):
            a(f"ds_read_b64_tr_b16 {vr(dst+2*half,2)}, v{s.vB+k} offset:{off+half*4*s.WP}")
    def aread(s,a,dst,buf,t):
        a(f"ds_read_b128 {vr(dst,4)}, v{s.vXa+t} offset:{buf*s.XS}")
    def dma_items(s,st,j):
        b=st%4
        return [[f"s_add_u32 m0, s49, {b*s.XS}", "s_nop 0", f"buffer_load_dwordx4 v{s.vDma+1}, s[8:11], s48 offen lds", "s_add_u32 s48, s48, 64"],
                [f"s_add_u32 m0, s28, {s.WOFF+b*s.WSTG}", "s_nop 0", f"buffer_load_dwordx4 v{s.vDma}, s[12:15], s34 offen lds", "s_add_u32 s34, s34, s33"]]
    def lane_setup(s,a):
        T=s.vT
        a(f"s_min_u32 s37, s23, {s.nW-1}")
        a(f"s_lshl_b32 s28, s37, 10")
        a(f"v_lshl_add_u32 v{T}, v{s.vLn}, 4, s28")
        if s.NC==4:
            a(f"v_lshrrev_b32 v{T+1}, 8, v{T}")
            a(f"v_bfe_u32 v{T+2}, v{T}, 4, 4")
            a(f"v_and_b32 v{T+3}, 3, v{T+1}")
            a(f"v_lshlrev_b32 v{T+3}, 2, v{T+3}")
            a(f"v_xor_b32 v{T+2}, v{T+2}, v{T+3}")
            a(f"v_lshlrev_b32 v{T+2}, 4, v{T+2}")
        else:
            a(f"v_lshrrev_b32 v{T+1}, 6, v{T}")
            a(f"v_mul_u32_u24 v{T+1}, 21846, v{T+1}")
            a(f"v_lshrrev_b32 v{T+1}, 16, v{T+1}")
            a(f"v_mul_u32_u24 v{T+2}, 192, v{T+1}")
            a(f"v_sub_u32 v{T+2}, v{T}, v{T+2}")
        a(f"v_mul_lo_u32 v{T+1}, v{T+1}, s26")
        a(f"s_lshl_b32 s37, s27, 1")
        a(f"v_add3_u32 v{s.vDma}, v{T+1}, v{T+2}, s37")
        a("s_lshl_b32 s49, s23, 10")
        a(f"s_lshl_b32 s37, s23, 4")
        a(f"v_lshrrev_b32 v{T}, 2, v{s.vLn}")
        a(f"v_add_u32 v{T}, s37, v{T}")
        a(f"v_bfe_u32 v{T+1}, v{T}, 2, 2")
        a(f"v_and_b32 v{T+2}, 3, v{s.vLn}")
        a(f"v_xor_b32 v{T+1}, v{T+1}, v{T+2}")
        a("s_lshl_b32 s38, s20, 7")
        a(f"v_add_u32 v{T}, s38, v{T}")
        a(f"v_mul_u32_u24 v{T}, 1280, v{T}")
        a(f"v_lshl_add_u32 v{s.vDma+1}, v{T+1}, 4, v{T}")
        a("s_lshl_b32 s33, s26, 5")
        a("s_lshl_b32 s37, s25, 1")
        a("s_and_b32 s38, s24, 1")
        if s.NC==3:
            a("s_cmp_eq_u32 s25, 0")
            a("s_cselect_b32 s38, s38, 0")
        a("s_add_u32 s40, s37, s38")
        a("s_xor_b32 s41, s40, 1")
    def setup2(s,a):
        T=s.vT
        a("s_lshl_b32 s37, s24, 5")
        a(f"v_add_u32 v{T}, s37, v{s.vL31}")
        a(f"v_bfe_u32 v{T+1}, v{T}, 2, 2")
        a(f"v_lshlrev_b32 v{T}, 6, v{T}")
        for t in range(2):
            a(f"v_add_u32 v{T+2}, {2*t}, v{s.vH}")
            a(f"v_xor_b32 v{T+2}, v{T+2}, v{T+1}")
            a(f"v_lshl_add_u32 v{s.vXa+t}, v{T+2}, 4, v{T}")
        a(f"v_bfe_u32 v{T}, v{s.vLn}, 2, 2")
        a(f"v_lshl_add_u32 v{T+3}, v{s.vH}, 3, v{T}")
        a(f"v_mul_u32_u24 v{T+3}, {s.WP}, v{T+3}")
        a(f"v_and_b32 v{T+1}, 3, v{s.vLn}")
        a(f"v_lshl_add_u32 v{T+3}, v{T+1}, 3, v{T+3}")
        a(f"v_bfe_u32 v{T+1}, v{s.vLn}, 4, 1")
        a(f"v_lshl_add_u32 v{T+3}, v{T+1}, 5, v{T+3}")
        for k in range(2):
            if s.swz:
                a(f"v_xor_b32 v{T+2}, s{40+k}, v{T}")
                a(f"v_lshl_add_u32 v{s.vB+k}, v{T+2}, 6, v{T+3}")
                a(f"v_add_u32 v{s.vB+k}, {s.WOFF}, v{s.vB+k}")
            else:
                a(f"s_lshl_b32 s37, s{40+k}, 6")
                a(f"s_add_u32 s37, s37, {s.WOFF}")
                a(f"v_add_u32 v{s.vB+k}, s37, v{T+3}")
    def loop(s,a,j,cform,tag):
        nt=s.nslots(j); nd=2; R=4; NST=20
        vF=76
        vF=s.vF
        def fa(p,t): return vF+24*p+4*t
        def fb(p,t,k): return vF+24*p+8+(t*2+k)*4
        def reads(p,st):
            for t in range(2):
                s.aread(a,fa(p,t),st%R,t)
                for k in range(nt): s.bread(a,fb(p,t,k),st%R,t,k)
        detf(a,1)
        a("s_mov_b32 s48, 0")
        a("s_mov_b32 s34, 0")
        for st in range(R): s.dma(a,st,j)
        detf(a,2)
        s.setup2(a)
        T=s.vT
        a(f"v_and_b32 v{T}, 15, v{s.vLn}")
        a(f"v_lshrrev_b32 v{T+1}, 4, v{s.vLn}")
        a(f"v_cmp_eq_u32 vcc, v{T}, v{T+1}")
        a(f"v_mov_b32 v{T+2}, 0x3f803f80")
        a("s_nop 0")
        for r in range(4): a(f"v_cndmask_b32 v{s.vSel+r}, 0, v{T+2}, vcc")
        for r in range(4): a(f"v_mov_b32 v{s.vRS+r}, 0")
        for r in range(4): a(f"v_mov_b32 v{s.vCSa+r}, 0")
        for r in range(16*nt): a(f"v_mov_b32 v{s.vAcc+r}, 0")
        a("s_cmp_lt_u32 s24, 2")
        a("s_cselect_b64 vcc, -1, 0")
        a("s_mov_b32 s42, 0")
        a(f"s_waitcnt vmcnt({(R-1)*nd})")
        a("s_barrier")
        detf(a,3)
        reads(0,0)
        def stage(st, lab):
            p=st%2
            pend=[]
            a("s_waitcnt lgkmcnt(0)")
            if st<NST-1:
                infl=max(0,min(R-2, NST-2-st))
                a(f"s_waitcnt vmcnt({infl*nd})")
                a("s_barrier")
                if st+R<NST: pend=s.dma_items(st+R,j)
                reads(1-p, st+1)
            for t in range(2):
                Af=fa(p,t)
                for k in range(nt):
                    acc=s.vAcc+16*k
                    C=vr(acc,16)
                    B=fb(p,t,k)
                    if cform: a(f"v_mfma_f32_32x32x16_bf16 {vr(acc,16)}, {vr(Af,4)}, {vr(B,4)}, {C}")
                    else:     a(f"v_mfma_f32_32x32x16_bf16 {vr(acc,16)}, {vr(B,4)}, {vr(Af,4)}, {C}")
                    if pend:
                        for l in pend.pop(0): a(l)
                    rr=[2*j, 2*j+1] if nt==1 else [2*j+k]
                    for r in rr:
                        t0=s.vRS+4+2*(r&1)
                        a(f"v_lshlrev_b32 v{t0}, 16, v{Af+r}")
                        a(f"v_and_b32 v{t0+1}, 0xffff0000, v{Af+r}")
                        a(f"v_add_f32 v{s.vRS}, v{s.vRS}, v{t0}")
                        a(f"v_add_f32 v{s.vRS+1}, v{s.vRS+1}, v{t0+1}")
                        a(f"v_fmac_f32 v{s.vRS+2}, v{t0}, v{t0}")
                        a(f"v_fmac_f32 v{s.vRS+3}, v{t0+1}, v{t0+1}")
            a(f"s_cbranch_vccz L_{tag}_ns{lab}")
            for t in range(2):
                a(f"v_mfma_f32_16x16x32_bf16 {vr(s.vCSa,4)}, {vr(fb(p,t,0),4)}, {vr(s.vSel,4)}, {vr(s.vCSa,4)}")
            a(f"L_{tag}_ns{lab}:")
            assert not pend
        a(f"L_{tag}_loop:")
        for st in range(4): stage(st, st)
        a("s_add_u32 s42, s42, 1")
        a("s_cmp_lt_u32 s42, 4")
        a(f"s_cbranch_scc1 L_{tag}_loop")
        for st in range(16,20): stage(st, st)
```

```python
from common import *
import gemm1
gb=gemm1.G2('b1',3)
import struct
def f32(x): return "0x%08x" % struct.unpack("<I", struct.pack("<f", x))[0]
SG=20480
vLn=2; vL15=3; vG=1
vDm=4
vAo=7
vBa=8
vRw=9
vT=10
vAcc=20
vAr=60
vBf=100
vKG=120
L_DEC=61440
PRIO=[1,0]
WITH_B1=[True]
DELAYB=[0]

def sig_mul(a, u, t, n):
    for i in range(n): a(f"v_mul_f32 v{t+i}, {f32(-1.4426950408889634)}, v{u+i}")
    for i in range(n): a(f"v_exp_f32 v{t+i}, v{t+i}")
    a("s_nop 0")
    for i in range(n): a(f"v_add_f32 v{t+i}, 1.0, v{t+i}")
    for i in range(n): a(f"v_rcp_f32 v{t+i}, v{t+i}")
    a("s_nop 0")
    for i in range(n): a(f"v_mul_f32 v{u+i}, v{u+i}, v{t+i}")
def rnd(a, u, n):
    for i in range(0,n,2):
        a(f"v_cvt_pk_bf16_f32 v{u+i}, v{u+i}, v{u+i+1}")
        a(f"v_and_b32 v{u+i+1}, 0xffff0000, v{u+i}")
        a(f"v_lshlrev_b32 v{u+i}, 16, v{u+i}")
def unpack(a, dst, src, n):
    for i in range(n):
        a(f"v_lshlrev_b32 v{dst+2*i}, 16, v{src+i}")
        a(f"v_and_b32 v{dst+2*i+1}, 0xffff0000, v{src+i}")

def aload(a, r, s, srdn, sc=""):
    a(f"s_mov_b32 s34, {s*32*16384}")
    a(f"s_add_u32 s35, s34, {4*16384}")
    a(f"buffer_load_dwordx2 {vr(r,2)}, v{vAo}, s[{srdn}:{srdn+3}], s34 offen{sc}")
    a(f"buffer_load_dwordx2 {vr(r+2,2)}, v{vAo}, s[{srdn}:{srdn+3}], s35 offen{sc}")
    a(f"buffer_load_dwordx2 {vr(r+4,2)}, v{vAo}, s[{srdn}:{srdn+3}], s34 offen offset:128{sc}")
    a(f"buffer_load_dwordx2 {vr(r+6,2)}, v{vAo}, s[{srdn}:{srdn+3}], s35 offen offset:128{sc}")
def wdma(a, s, slot, nd, srdn):
    a(f"s_mov_b32 s34, {s*128*1280}")
    for q in range(nd):
        a(f"s_add_u32 m0, s{28+q}, {slot*SG}")
        a("s_nop 0")
        a(f"buffer_load_dwordx4 v{vDm+q}, s[{srdn}:{srdn+3}], s34 offen lds")
def bfr(a, dst, slot):
    for ct in range(5):
        o=slot*SG+ct*32
        a(f"ds_read_b64_tr_b16 {vr(dst+4*ct,2)}, v{vBa} offset:{o}")
        a(f"ds_read_b64_tr_b16 {vr(dst+4*ct+2,2)}, v{vBa} offset:{o+16*160}")
def mm(a, A, B, first):
    for ct in range(5):
        for tt in range(2):
            acc=vAcc+4*(ct*2+tt)
            C="0" if first else vr(acc,4)
            a(f"v_mfma_f32_16x16x32_bf16 {vr(acc,4)}, {vr(B+4*ct,4)}, {vr(A+4*tt,4)}, {C}")

def reduce_write(a):
    a("s_barrier")
    a("s_nop 4")
    for ct in range(5):
        for tt in range(2):
            acc=vAcc+4*(ct*2+tt)
            a(f"ds_write_b128 v{vRw}, {vr(acc,4)} offset:{tt*5120+ct*64}")
    a("s_waitcnt lgkmcnt(0)")
    a("s_barrier")

def item_addr(a, r):
    a(f"v_add_u32 v{vT}, {512*r}, v0")
    a(f"v_min_u32 v{vT}, 639, v{vT}")
    a(f"v_mul_u32_u24 v{vT+1}, 6554, v{vT}")
    a(f"v_lshrrev_b32 v{vT+1}, 16, v{vT+1}")
    a(f"v_mul_u32_u24 v{vT+2}, 10, v{vT+1}")
    a(f"v_sub_u32 v{vT+2}, v{vT}, v{vT+2}")
    a(f"v_bfe_u32 v{vT+6}, v{vT+1}, 1, 2")
    a(f"v_lshlrev_b32 v{vT+7}, 1, v{vT+2}")
    a(f"v_xor_b32 v{vT+7}, v{vT+7}, v{vT+6}")
    a(f"v_mul_u32_u24 v{vT+8}, 320, v{vT+1}")
    a(f"v_lshl_add_u32 v{vT+3}, v{vT+7}, 4, v{vT+8}")
    a(f"v_xor_b32 v{vT+7}, 1, v{vT+7}")
    a(f"v_lshl_add_u32 v{vT+5}, v{vT+7}, 4, v{vT+8}")
    a("s_lshl_b32 s37, s20, 6")
    a(f"v_add_u32 v{vT+4}, s37, v{vT+1}")
    a(f"v_mul_u32_u24 v{vT+4}, 1280, v{vT+4}")
    a(f"v_lshl_add_u32 v{vT+4}, v{vT+2}, 4, v{vT+4}")
    a("s_mul_i32 s37, s21, 160")
    a(f"v_add_u32 v{vT+4}, s37, v{vT+4}")

def item_sum(a):
    P=vAcc
    for kq in range(4):
        a(f"ds_read_b128 {vr(P+8*kq,4)}, v{vT+3} offset:{kq*20480}")
        a(f"ds_read_b128 {vr(P+8*kq+4,4)}, v{vT+5} offset:{kq*20480}")
    a("s_waitcnt lgkmcnt(0)")
    for i in range(8): a(f"v_add_f32 v{P+i}, v{P+i}, v{P+8+i}")
    for i in range(8): a(f"v_add_f32 v{P+16+i}, v{P+16+i}, v{P+24+i}")
    for i in range(8): a(f"v_add_f32 v{P+i}, v{P+i}, v{P+16+i}")
    rnd(a, P, 8)

def setup(a):
    a("s_and_b32 s20, s3, 7")
    a("s_lshl_b32 s20, s20, 2")
    a("s_bfe_u32 s21, s3, 0x20003")
    a("s_add_u32 s20, s20, s21")
    a("s_lshr_b32 s21, s3, 5")
    a(f"v_lshrrev_b32 v{vT}, 6, v0")
    a(f"v_and_b32 v{vLn}, 63, v0")
    a("s_nop 0")
    a(f"v_readfirstlane_b32 s23, v{vT}")
    a(f"v_and_b32 v{vL15}, 15, v{vLn}")
    a(f"v_lshrrev_b32 v{vG}, 4, v{vLn}")
    a("s_and_b32 s24, s23, 1")
    a("s_lshr_b32 s25, s23, 1")
    for q in range(3):
        a(f"s_add_u32 s37, s23, {8*q}")
        a(f"s_min_u32 s37, s37, 19")
        a(f"s_lshl_b32 s{28+q}, s37, 10")
        a(f"v_lshl_add_u32 v{vT}, v{vLn}, 4, s{28+q}")
        a(f"v_lshrrev_b32 v{vT+1}, 5, v{vT}")
        a(f"v_mul_u32_u24 v{vT+1}, 13108, v{vT+1}")
        a(f"v_lshrrev_b32 v{vT+1}, 16, v{vT+1}")
        a(f"v_mul_u32_u24 v{vT+2}, 160, v{vT+1}")
        a(f"v_sub_u32 v{vT+2}, v{vT}, v{vT+2}")
        a(f"v_mul_u32_u24 v{vT+1}, 1280, v{vT+1}")
        a(f"s_mul_i32 s37, s21, 160")
        a(f"v_add3_u32 v{vDm+q}, v{vT+1}, v{vT+2}, s37")
    a("s_lshl_b32 s37, s25, 3")
    a(f"v_add_u32 v{vT}, s37, v{vG}")
    a(f"v_lshlrev_b32 v{vT}, 14, v{vT}")
    a("s_lshl_b32 s37, s20, 6")
    a("s_lshl_b32 s38, s24, 5")
    a("s_add_u32 s37, s37, s38")
    a(f"v_add_u32 v{vT+1}, s37, v{vL15}")
    a(f"v_lshl_add_u32 v{vAo}, v{vT+1}, 3, v{vT}")
    a(f"v_bfe_u32 v{vT}, v{vLn}, 2, 2")
    a(f"v_lshl_add_u32 v{vT}, v{vG}, 2, v{vT}")
    a("s_lshl_b32 s37, s25, 5")
    a(f"v_add_u32 v{vT}, s37, v{vT}")
    a(f"v_mul_u32_u24 v{vT}, 160, v{vT}")
    a(f"v_and_b32 v{vT+1}, 3, v{vLn}")
    a(f"v_lshl_add_u32 v{vBa}, v{vT+1}, 3, v{vT}")
    a("s_mul_i32 s37, s25, 20480")
    a("s_mul_i32 s38, s24, 10240")
    a("s_add_u32 s37, s37, s38")
    a(f"v_bfe_u32 v{vT}, v{vL15}, 1, 2")
    a(f"v_xor_b32 v{vT}, v{vT}, v{vG}")
    a(f"v_mul_u32_u24 v{vT+1}, 320, v{vL15}")
    a(f"v_lshl_add_u32 v{vT}, v{vT}, 4, v{vT+1}")
    a(f"v_add_u32 v{vRw}, s37, v{vT}")

def srds(a):
    a("s_load_dwordx4 s[56:59], s[0:1], 48")
    a("s_load_dwordx2 s[60:61], s[0:1], 16")
    a("s_load_dwordx2 s[62:63], s[0:1], 0")
    a("s_load_dwordx4 s[64:67], s[0:1], 64")
    a("s_waitcnt lgkmcnt(0)")
    srd(a, 8, 4, 5, WS_H, WS_O-WS_H)
    srd(a, 12, 56, 57, 0, 1536*1280)
    srd(a, 16, 64, 65, 0, 2621440)
    srd(a, 44, 58, 59, 0, 1280)
    srd(a, 48, 62, 63, 0, 2621440)
    srd(a, 52, 60, 61, 0, 640*1280)
    srd(a, 68, 4, 5, WS_O, WS_G-WS_O)

def b1_task(a):
    g=gb; T=g.vT
    a("L_b1_task:")
    a("s_load_dwordx2 s[56:57], s[0:1], 0")
    a("s_load_dwordx4 s[60:63], s[0:1], 32")
    a(f"v_lshrrev_b32 v{T}, 6, v0")
    a(f"v_and_b32 v{g.vLn}, 63, v0")
    a("s_nop 0")
    a(f"v_readfirstlane_b32 s23, v{T}")
    a(f"v_and_b32 v{g.vL31}, 31, v{g.vLn}")
    a(f"v_lshrrev_b32 v{g.vH}, 5, v{g.vLn}")
    a("s_and_b32 s24, s23, 3")
    a("s_lshr_b32 s25, s23, 2")
    a("s_mul_i32 s27, s21, 96")
    a("s_mul_i32 s35, s21, 24")
    a("s_mov_b32 s26, 3072")
    g.lane_setup(a)
    a("s_waitcnt lgkmcnt(0)")
    srd(a, 8, 56, 57, 0, 2621440)
    srd(a, 12, 60, 61, 0, 640*3072)
    srd(a, 16, 4, 5, WS_H, WS_O-WS_H)
    srd(a, 44, 62, 63, 0, 3072)
    a("s_lshl_b32 s37, s40, 5")
    a("s_add_u32 s37, s37, s27")
    a(f"v_add_u32 v{T}, s37, v{g.vL31}")
    a(f"v_lshlrev_b32 v{T}, 1, v{T}")
    a(f"buffer_load_ushort v{g.vBias}, v{T}, s[44:47], 0 offen")
    a("s_cmp_eq_u32 s25, 0")
    a("s_cbranch_scc0 L_b1_j1")
    g.loop(a, 0, False, "b1a")
    a("s_branch L_b1_fin")
    a("L_b1_j1:")
    g.loop(a, 1, False, "b1b")
    a("L_b1_fin:")
    g.finalize(a, True)
    a("s_cmp_eq_u32 s25, 0")
    a("s_cbranch_scc0 L_b1_e1")
    g.epi_ct(a, 0, 3, " sc1")
    a("s_branch L_b1_pub")
    a("L_b1_e1:")
    g.epi_ct(a, 1, 3, " sc1")
    a("L_b1_pub:")
    def off(a):
        a("s_lshl_b32 s36, s20, 4")
        a("s_add_u32 s36, s36, s21")
        a("s_lshl_b32 s36, s36, 7")
        a(f"s_add_u32 s36, s36, {WS_FL+32768}")
    publish(a, "b1", off)

def wait_flags(a, tag, base_sgpr_code, nfl, sel, force_help):
    a("s_cmp_lg_u32 s23, 0")
    a(f"s_cbranch_scc1 L_{tag}_wd")
    a(f"s_mov_b32 s{sel}, 0")
    base_sgpr_code(a)
    a(f"v_and_b32 v{vT}, {nfl-1}, v{vLn}")
    a(f"v_lshl_add_u32 v{vT}, v{vT}, 7, s37")
    a("s_mov_b32 s38, 0")
    a(f"L_{tag}_poll:")
    a(f"global_load_dwordx2 v[{vT+2}:{vT+3}], v{vT}, s[4:5] sc1")
    a("s_waitcnt vmcnt(0)")
    flag_bad(a, vT+2, vT+1, "vcc")
    a("s_nop 3")
    a("s_cmp_eq_u64 vcc, 0")
    a(f"s_cbranch_scc1 L_{tag}_pok")
    a("s_sleep 12")
    a("s_add_u32 s38, s38, 1")
    a(f"s_cmp_lt_u32 s38, {2000 if not force_help else 1}")
    a(f"s_cbranch_scc1 L_{tag}_poll")
    a("s_ff1_i32_b64 s39, vcc")
    a(f"s_add_u32 s{sel}, s39, 1")
    a(f"L_{tag}_pok:")
    a(f"v_mov_b32 v{vT}, {L_DEC}")
    a(f"v_mov_b32 v{vT+1}, s{sel}")
    a(f"ds_write_b32 v{vT}, v{vT+1}")
    a(f"L_{tag}_wd:")
    a("s_waitcnt vmcnt(0) lgkmcnt(0)")
    a("s_barrier")
    a(f"v_mov_b32 v{vT}, {L_DEC}")
    a(f"ds_read_b32 v{vT+1}, v{vT}")
    a("s_waitcnt lgkmcnt(0)")
    a(f"v_readfirstlane_b32 s{sel}, v{vT+1}")
    a("s_nop 3")

def mlp_role(a, force_help=False):
    tag="mb"
    a(f"s_setprio {PRIO[0]}")
    if not WITH_B1[0]:
        setup(a); srds(a)
        a("s_branch L_mb_m2go")
    a("s_load_dwordx4 s[56:59], s[0:1], 0")
    a("s_load_dwordx2 s[60:61], s[0:1], 16")
    a("s_load_dwordx2 s[62:63], s[0:1], 32")
    a("s_load_dwordx2 s[64:65], s[0:1], 48")
    a("s_lshl_b32 s37, s3, 13")
    a("v_lshl_add_u32 v4, v0, 4, s37")
    a("s_mov_b32 s38, 0x200000")
    a("s_waitcnt lgkmcnt(0)")
    d=72
    for (lo,size,rounds) in ((56,2621440,2),(58,2457600,2),(62,1966080,1),(64,1966080,1),(60,819200,1)):
        srd(a, 8, lo, lo+1, 0, size)
        for r in range(rounds):
            a(f"buffer_load_dwordx4 {vr(d,4)}, v4, s[8:11], {'0' if r==0 else 's38'} offen")
            d+=4
    if DELAYB[0]:
        a("s_min_u32 s37, s3, 239")
        a("s_lshl_b32 s37, s37, 7")
        a(f"s_add_u32 s37, s37, {WS_FL+65536}")
        a("v_mov_b32 v10, s37")
        a("s_mov_b32 s38, 0")
        a("v_readfirstlane_b32 s39, v0")
        a("s_nop 3")
        a("s_cmp_lg_u32 s39, 0")
        a("s_cbranch_scc1 L_mb_dl2")
        a("L_mb_dl:")
        a("s_sleep 16")
        a("global_load_dwordx2 v[12:13], v10, s[4:5] sc1")
        a("s_waitcnt vmcnt(0)")
        flag_bad(a, 12, 11, "vcc")
        a("s_nop 3")
        a("s_cmp_eq_u64 vcc, 0")
        a("s_cbranch_scc1 L_mb_dl2")
        a("s_add_u32 s38, s38, 1")
        a("s_cmp_lt_u32 s38, 40")
        a("s_cbranch_scc1 L_mb_dl")
        a("L_mb_dl2:")
        a("s_barrier")
    a("s_and_b32 s20, s3, 7")
    a("s_lshl_b32 s20, s20, 1")
    a("s_bfe_u32 s21, s3, 0x10003")
    a("s_add_u32 s20, s20, s21")
    a("s_lshr_b32 s21, s3, 4")
    b1_task(a)
    a("L_mb_m2:")
    setup(a)
    srds(a)
    def hb(a):
        a("s_lshr_b32 s37, s20, 1")
        a("s_lshl_b32 s37, s37, 11")
        a(f"s_add_u32 s37, s37, {WS_FL+32768}")
    wait_flags(a, "mbh", hb, 16, 95, force_help)
    a("s_cmp_eq_u32 s95, 0")
    a("s_cbranch_scc1 L_mb_m2go")
    a("s_barrier")
    a("s_lshr_b32 s20, s20, 1")
    a("s_sub_u32 s21, s95, 1")
    a("s_branch L_b1_task")
    a("L_mb_m2go:")
    a(f"s_setprio {PRIO[1]}")
    tl_mid(a,1)
    A0=vAr; B0=vBf
    NS=12
    a("s_cmp_ge_u32 s23, 4")
    a(f"s_cbranch_scc1 L_{tag}_hi")
    for nd,lab in ((3,"lo"),(2,"hi")):
        if lab=="hi": a(f"L_{tag}_hi:")
        npst=4+nd
        def iss(slot):
            r=A0+8*slot
            a(f"s_add_u32 s35, s42, {4*16384}")
            a(f"buffer_load_dwordx2 {vr(r,2)}, v{vAo}, s[8:11], s42 offen")
            a(f"buffer_load_dwordx2 {vr(r+2,2)}, v{vAo}, s[8:11], s35 offen")
            a(f"buffer_load_dwordx2 {vr(r+4,2)}, v{vAo}, s[8:11], s42 offen offset:128")
            a(f"buffer_load_dwordx2 {vr(r+6,2)}, v{vAo}, s[8:11], s35 offen offset:128")
            a(f"s_add_u32 s42, s42, {32*16384}")
            for q in range(nd):
                a(f"s_add_u32 m0, s{28+q}, {slot*SG}")
                a("s_nop 0")
                a(f"buffer_load_dwordx4 v{vDm+q}, s[12:15], s43 offen lds")
            a(f"s_add_u32 s43, s43, {128*1280}")
        a("s_mov_b32 s42, 0"); a("s_mov_b32 s43, 0"); a("s_mov_b32 s41, 0")
        for s in range(3): iss(s)
        for r in range(40): a(f"v_mov_b32 v{vAcc+r}, 0")
        a(f"s_waitcnt vmcnt({2*npst})")
        a("s_barrier")
        bfr(a, B0, 0)
        def stg(s):
            a("s_waitcnt lgkmcnt(0)")
            mm(a, A0+8*(s%3), B0, False)
            if s<NS-1:
                a(f"s_waitcnt vmcnt({npst if s+2<NS else 0})")
                a("s_barrier")
                if s+3<NS: iss(s%3)
                bfr(a, B0, (s+1)%3)
        a(f"L_{tag}_lp{lab}:")
        for s in range(3): stg(s)
        a("s_add_u32 s41, s41, 1")
        a("s_cmp_lt_u32 s41, 3")
        a(f"s_cbranch_scc1 L_{tag}_lp{lab}")
        for s in range(9,12): stg(s)
        if lab=="lo": a(f"s_branch L_{tag}_red")
    a(f"L_{tag}_red:")
    reduce_write(a)
    for r in range(2):
        item_addr(a, r)
        a(f"v_lshl_add_u32 v{vT+6}, v{vT+2}, 4, s37")
        a(f"buffer_load_dwordx4 {vr(vAr,4)}, v{vT+6}, s[44:47], 0 offen")
        item_sum(a)
        a("s_waitcnt vmcnt(0)")
        P=vAcc; U=vAr+8
        unpack(a, U, vAr, 4)
        for i in range(8): a(f"v_add_f32 v{P+i}, v{P+i}, v{U+i}")
        rnd(a, P, 8)
        sig_mul(a, P, U, 8)
        for i in range(4): a(f"v_cvt_pk_bf16_f32 v{vKG+4*r+i}, v{P+2*i}, v{P+2*i+1}")
    a(f"L_{tag}_oproj:")
    tl_mid(a,0)
    a("s_barrier")
    for s_ in range(3): wdma(a, s_, s_, 3, 52)
    for s_ in (3,4):
        a(f"s_mov_b32 s34, {s_*128*1280}")
        for q in range(3):
            a(f"buffer_load_dwordx4 {vr(vAr+4*q,4)}, v{vDm+q}, s[52:55], s34 offen")
    def ab(a):
        a("s_lshr_b32 s37, s20, 2")
        a("s_lshl_b32 s37, s37, 12")
        a(f"s_add_u32 s37, s37, {WS_FL}")
    wait_flags(a, "mba", ab, 32, 97, force_help)
    a("s_cmp_eq_u32 s97, 0")
    a(f"s_cbranch_scc1 L_{tag}_go")
    a("s_barrier")
    a("s_sub_u32 s39, s97, 1")
    a("s_lshr_b32 s40, s39, 2")
    a("s_and_b32 s41, s39, 3")
    a("s_lshl_b32 s41, s41, 3")
    a("s_or_b32 s40, s40, s41")
    a("s_lshr_b32 s41, s20, 2")
    a("s_lshl_b32 s41, s41, 5")
    a("s_or_b32 s2, s40, s41")
    a("s_setprio 0")
    a("s_branch L_k2_att")
    a(f"L_{tag}_resume:")
    a("s_setprio 0")
    setup(a)
    srds(a)
    a(f"s_branch L_{tag}_oproj")
    a(f"L_{tag}_go:")
    for s_ in range(5): aload(a, vAr+8*s_, s_, 68)
    bfr(a, vBf, 0)
    a("s_waitcnt vmcnt(16) lgkmcnt(0)")
    mm(a, vAr, vBf, True)
    a("s_barrier")
    wdma(a, 3, 0, 3, 52)
    bfr(a, vBf, 1)
    a("s_waitcnt vmcnt(15) lgkmcnt(0)")
    mm(a, vAr+8, vBf, False)
    a("s_barrier")
    wdma(a, 4, 1, 3, 52)
    bfr(a, vBf, 2)
    a("s_waitcnt vmcnt(14) lgkmcnt(0)")
    mm(a, vAr+16, vBf, False)
    a("s_waitcnt vmcnt(3)")
    a("s_barrier")
    bfr(a, vBf, 0)
    a("s_waitcnt lgkmcnt(0)")
    mm(a, vAr+24, vBf, False)
    a("s_waitcnt vmcnt(0)")
    a("s_barrier")
    bfr(a, vBf, 1)
    item_addr(a, 1)
    a(f"buffer_load_dwordx4 {vr(vAr+4,4)}, v{vT+4}, s[48:51], 0 offen")
    item_addr(a, 0)
    a(f"buffer_load_dwordx4 {vr(vAr,4)}, v{vT+4}, s[48:51], 0 offen")
    a("s_waitcnt lgkmcnt(0)")
    mm(a, vAr+32, vBf, False)
    reduce_write(a)
    for r in range(2):
        if r==1:
            a("s_cmp_ge_u32 s23, 2")
            a(f"s_cbranch_scc1 L_{tag}_done")
            item_addr(a, 1)
        item_sum(a)
        if r==0: a("s_waitcnt vmcnt(0)")
        P=vAcc; U=vAr+8
        unpack(a, U, vKG+4*r, 4)
        for i in range(8): a(f"v_mul_f32 v{P+i}, v{P+i}, v{U+i}")
        rnd(a, P, 8)
        unpack(a, U, vAr+4*r, 4)
        for i in range(8): a(f"v_add_f32 v{P+i}, v{P+i}, v{U+i}")
        for i in range(4): a(f"v_cvt_pk_bf16_f32 v{vBf+4*r+i}, v{P+2*i}, v{P+2*i+1}")
        a(f"buffer_store_dwordx4 {vr(vBf+4*r,4)}, v{vT+4}, s[16:19], 0 offen")
    a(f"L_{tag}_done:")
```

```python
from common import *
import struct
def f32(x): return "0x%08x" % struct.unpack("<I", struct.pack("<f", x))[0]
QSCALE=(20**-0.5)*1.4426950408889634
XSTG=16384

class G:
    def __init__(s, tag, NC, RING, base_v):
        s.tag=tag; s.NC=NC; s.RING=RING
        s.WP=64*NC
        s.WSTG=64*s.WP
        s.swz=(NC==4)
        s.WOFF=RING*XSTG
        s.L_ROWA=s.WOFF+RING*s.WSTG; s.L_ROWB=s.L_ROWA+512; s.L_CS=s.L_ROWB+512; s.L_BIAS=s.L_CS+512
        s.L_SCR=s.L_BIAS+512; s.L_EX=s.L_SCR+2048
        s.LDS=s.L_EX+2048
        s.nW=s.WSTG//1024
        s.vH=1; s.vLn=2; s.vL31=3
        s.vDma=4
        s.vB=8
        s.vXa=12
        s.vSt=16
        s.vBias=22
        s.vT=24
        s.vAcc=44
        s.vAf=76
        s.vBf=84
        s.vSL=100
        s.vRS=100
        s.vCSa=108
        s.vSel=112
        s.vE=76
        s.vPR=base_v
        s.vK=s.vT+16
    def nslots(s,j): return 2 if (s.NC==4 or j==0) else 1
    def nwd(s,j):
        return 2 if (s.NC==4 or j==0) else 1
    def nd(s,j): return 2+s.nwd(j)

    def bread(s,a,dst,buf,t,k):
        off=buf*s.WSTG+(16*t)*s.WP
        for half in range(2):
            o=off+half*4*s.WP
            base=s.vB+k
            if o>=32768 and s.RING>2: base=s.vB+2+k; o-=32768
            a(f"ds_read_b64_tr_b16 {vr(dst+2*half,2)}, v{base} offset:{o}")
    def aread(s,a,dst,buf,t):
        a(f"ds_read_b128 {vr(dst,4)}, v{s.vXa+t} offset:{buf*XSTG}")
    def dma_items(s,st,j):
        b=st%s.RING; it=[]
        for q in range(2):
            it.append([f"s_mov_b32 s48, {st*128}", f"s_add_u32 m0, s49, {b*XSTG+q*1024}", "s_nop 0", f"buffer_load_dwordx4 v{s.vDma+2+q}, s[8:11], s48 offen lds"])
        for q in range(s.nwd(j)):
            it.append([f"s_mul_i32 s34, s33, {st}", f"s_add_u32 m0, s{28+q}, {s.WOFF+b*s.WSTG}", "s_nop 0", f"buffer_load_dwordx4 v{s.vDma+q}, s[12:15], s34 offen lds"])
        return it
    def dma(s,a,st,j):
        for it in s.dma_items(st,j):
            for l in it: a(l)

    def lane_setup(s,a):
        T=s.vT
        for q in range(2):
            a(f"s_add_u32 s37, s23, {8*q}")
            a(f"s_min_u32 s37, s37, {s.nW-1}")
            a(f"s_lshl_b32 s{28+q}, s37, 10")
            a(f"v_lshl_add_u32 v{T}, v{s.vLn}, 4, s{28+q}")
            if s.NC==4:
                a(f"v_lshrrev_b32 v{T+1}, 8, v{T}")
                a(f"v_bfe_u32 v{T+2}, v{T}, 4, 4")
                a(f"v_and_b32 v{T+3}, 3, v{T+1}")
                a(f"v_lshlrev_b32 v{T+3}, 2, v{T+3}")
                a(f"v_xor_b32 v{T+2}, v{T+2}, v{T+3}")
                a(f"v_lshlrev_b32 v{T+2}, 4, v{T+2}")
            else:
                a(f"v_lshrrev_b32 v{T+1}, 6, v{T}")
                a(f"v_mul_u32_u24 v{T+1}, 21846, v{T+1}")
                a(f"v_lshrrev_b32 v{T+1}, 16, v{T+1}")
                a(f"v_mul_u32_u24 v{T+2}, 192, v{T+1}")
                a(f"v_sub_u32 v{T+2}, v{T}, v{T+2}")
            a(f"v_mul_lo_u32 v{T+1}, v{T+1}, s26")
            a(f"s_lshl_b32 s37, s27, 1")
            a(f"v_add3_u32 v{s.vDma+q}, v{T+1}, v{T+2}, s37")
        a("s_lshl_b32 s49, s23, 11")
        for q in range(2):
            a(f"s_lshl_b32 s37, s23, 4")
            a(f"s_add_u32 s37, s37, {8*q}")
            a(f"v_lshrrev_b32 v{T}, 3, v{s.vLn}")
            a(f"v_add_u32 v{T}, s37, v{T}")
            a(f"v_bfe_u32 v{T+1}, v{T}, 1, 3")
            a(f"v_and_b32 v{T+2}, 7, v{s.vLn}")
            a(f"v_xor_b32 v{T+1}, v{T+1}, v{T+2}")
            a("s_lshl_b32 s38, s20, 7")
            a(f"v_add_u32 v{T}, s38, v{T}")
            a(f"v_mul_u32_u24 v{T}, 1280, v{T}")
            a(f"v_lshl_add_u32 v{s.vDma+2+q}, v{T+1}, 4, v{T}")
        a("s_lshl_b32 s33, s26, 6")
        a("s_lshl_b32 s37, s25, 1")
        a("s_and_b32 s38, s24, 1")
        if s.NC==3:
            a("s_cmp_eq_u32 s25, 0")
            a("s_cselect_b32 s38, s38, 0")
        a("s_add_u32 s40, s37, s38")
        a("s_xor_b32 s41, s40, 1")
    def setup2(s,a):
        T=s.vT
        a("s_lshl_b32 s37, s24, 5")
        a(f"v_add_u32 v{T}, s37, v{s.vL31}")
        a(f"v_bfe_u32 v{T+1}, v{T}, 1, 3")
        a(f"v_lshlrev_b32 v{T}, 7, v{T}")
        for t in range(4):
            a(f"v_add_u32 v{T+2}, {2*t}, v{s.vH}")
            a(f"v_xor_b32 v{T+2}, v{T+2}, v{T+1}")
            a(f"v_lshl_add_u32 v{s.vXa+t}, v{T+2}, 4, v{T}")
        a(f"v_bfe_u32 v{T}, v{s.vLn}, 2, 2")
        a(f"v_lshl_add_u32 v{T+3}, v{s.vH}, 3, v{T}")
        a(f"v_mul_u32_u24 v{T+3}, {s.WP}, v{T+3}")
        a(f"v_and_b32 v{T+1}, 3, v{s.vLn}")
        a(f"v_lshl_add_u32 v{T+3}, v{T+1}, 3, v{T+3}")
        a(f"v_bfe_u32 v{T+1}, v{s.vLn}, 4, 1")
        a(f"v_lshl_add_u32 v{T+3}, v{T+1}, 5, v{T+3}")
        for k in range(2):
            if s.swz:
                a(f"v_xor_b32 v{T+2}, s{40+k}, v{T}")
                a(f"v_lshl_add_u32 v{s.vB+k}, v{T+2}, 6, v{T+3}")
                a(f"v_add_u32 v{s.vB+k}, {s.WOFF}, v{s.vB+k}")
            else:
                a(f"s_lshl_b32 s37, s{40+k}, 6")
                a(f"s_add_u32 s37, s37, {s.WOFF}")
                a(f"v_add_u32 v{s.vB+k}, s37, v{T+3}")
            a(f"v_add_u32 v{s.vB+2+k}, 32768, v{s.vB+k}")

    def loop(s,a,j,cform,tag):
        nt=s.nslots(j); nd=s.nd(j); R=s.RING
        assert R==2
        def fb(p,k): return s.vBf+8*p+4*k
        for st in range(R): s.dma(a,st,j)
        s.setup2(a)
        T=s.vT
        a(f"v_and_b32 v{T}, 15, v{s.vLn}")
        a(f"v_lshrrev_b32 v{T+1}, 4, v{s.vLn}")
        a(f"v_cmp_eq_u32 vcc, v{T}, v{T+1}")
        a(f"v_mov_b32 v{T+2}, 0x3f803f80")
        a("s_nop 0")
        for r in range(4): a(f"v_cndmask_b32 v{s.vSel+r}, 0, v{T+2}, vcc")
        for r in range(4): a(f"v_mov_b32 v{s.vRS+r}, 0")
        for r in range(4): a(f"v_mov_b32 v{s.vCSa+r}, 0")
        a("s_cmp_lt_u32 s24, 2")
        a("s_cselect_b64 vcc, -1, 0")
        a(f"s_waitcnt vmcnt({nd})")
        a("s_barrier")
        s.aread(a,s.vAf,0,0)
        for k in range(nt): s.bread(a,fb(0,k),0,0,k)
        step=0; pend=[]
        for st in range(10):
            for t in range(4):
                p=step%2
                a("s_waitcnt lgkmcnt(0)")
                if t==3 and st<9:
                    assert not pend
                    a("s_waitcnt vmcnt(0)")
                    a("s_barrier")
                    if st+R<10: pend=s.dma_items(st+R,j)
                if t<3:
                    s.aread(a,s.vAf+4*(1-p),st%R,t+1)
                    for k in range(nt): s.bread(a,fb(1-p,k),st%R,t+1,k)
                elif st<9:
                    s.aread(a,s.vAf+4*(1-p),(st+1)%R,0)
                    for k in range(nt): s.bread(a,fb(1-p,k),(st+1)%R,0,k)
                Af=s.vAf+4*p
                for k in range(nt):
                    acc=s.vAcc+16*k
                    C="0" if step==0 else vr(acc,16)
                    if cform: a(f"v_mfma_f32_32x32x16_bf16 {vr(acc,16)}, {vr(Af,4)}, {vr(fb(p,k),4)}, {C}")
                    else:     a(f"v_mfma_f32_32x32x16_bf16 {vr(acc,16)}, {vr(fb(p,k),4)}, {vr(Af,4)}, {C}")
                    for _ in range(2):
                        if pend:
                            for l in pend.pop(0): a(l)
                    rr=[2*j, 2*j+1] if nt==1 else [2*j+k]
                    for r in rr:
                        t0=s.vRS+4+2*(r&1)
                        a(f"v_lshlrev_b32 v{t0}, 16, v{Af+r}")
                        a(f"v_and_b32 v{t0+1}, 0xffff0000, v{Af+r}")
                        a(f"v_add_f32 v{s.vRS}, v{s.vRS}, v{t0}")
                        a(f"v_add_f32 v{s.vRS+1}, v{s.vRS+1}, v{t0+1}")
                        a(f"v_fmac_f32 v{s.vRS+2}, v{t0}, v{t0}")
                        a(f"v_fmac_f32 v{s.vRS+3}, v{t0+1}, v{t0+1}")
                a(f"s_cbranch_vccz L_{tag}_ns{step}")
                a(f"v_mfma_f32_16x16x32_bf16 {vr(s.vCSa,4)}, {vr(fb(p,0),4)}, {vr(s.vSel,4)}, {vr(s.vCSa,4)}")
                a(f"L_{tag}_ns{step}:")
                step+=1

    def finalize(s,a,mlp):
        T=s.vT; St=s.vSt; tag=s.tag
        a("s_nop 7")
        a(f"v_add_f32 v{St}, v{s.vRS}, v{s.vRS+1}")
        a(f"v_add_f32 v{St+1}, v{s.vRS+2}, v{s.vRS+3}")
        s.xsum(a, St, T, T+1)
        s.xsum(a, St+1, T, T+1)
        a("s_lshl_b32 s37, s25, 10")
        a("s_lshl_b32 s38, s24, 8")
        a(f"s_add_u32 s38, s38, {s.L_EX}")
        a("s_add_u32 s37, s37, s38")
        a(f"v_lshl_add_u32 v{T+2}, v{s.vL31}, 3, s37")
        a(f"ds_write_b64 v{T+2}, {vr(St,2)}")
        a("s_cmp_lt_u32 s24, 2")
        a(f"s_cbranch_scc0 L_{tag}_nocs")
        a(f"s_lshl_b32 s37, s23, 8")
        a(f"s_add_u32 s37, s37, {s.L_SCR}")
        a(f"v_and_b32 v{T}, 15, v{s.vLn}")
        a(f"v_lshrrev_b32 v{T+1}, 4, v{s.vLn}")
        a(f"v_lshlrev_b32 v{T+2}, 6, v{T}")
        a(f"v_lshl_add_u32 v{T+2}, v{T+1}, 4, v{T+2}")
        a(f"v_add_u32 v{T+2}, s37, v{T+2}")
        a(f"v_cmp_gt_u32 vcc, 4, v{T}")
        a("s_and_saveexec_b64 s[54:55], vcc")
        a(f"ds_write_b128 v{T+2}, {vr(s.vCSa,4)}")
        a("s_mov_b64 exec, s[54:55]")
        a(f"v_lshl_add_u32 v{T+2}, v{s.vL31}, 2, s37")
        a("s_waitcnt lgkmcnt(0)")
        a(f"ds_read_b32 v{T}, v{T+2}")
        a(f"ds_read_b32 v{T+1}, v{T+2} offset:128")
        a("s_waitcnt lgkmcnt(0)")
        a(f"v_add_f32 v{St+4}, v{T}, v{T+1}")
        a(f"s_lshl_b32 s37, s40, 7")
        a(f"s_add_u32 s37, s37, {s.L_CS}")
        a(f"v_lshl_add_u32 v{T+6}, v{s.vL31}, 2, s37")
        a(f"ds_write_b32 v{T+6}, v{St+4}")
        if mlp:
            a(f"v_lshlrev_b32 v{s.vBias}, 16, v{s.vBias}")
            a(f"ds_write_b32 v{T+6}, v{s.vBias} offset:512")
        a(f"L_{tag}_nocs:")
        a("s_waitcnt lgkmcnt(0)")
        a("s_barrier")
        a("s_cmp_eq_u32 s25, 0")
        a(f"s_cbranch_scc1 L_{tag}_fin2")
        a(f"v_lshl_add_u32 v{T+2}, v{s.vL31}, 3, s38")
        a(f"ds_read_b64 {vr(T+4,2)}, v{T+2}")
        a("s_waitcnt lgkmcnt(0)")
        a(f"v_add_f32 v{St}, v{St}, v{T+4}")
        a(f"v_add_f32 v{St+1}, v{St+1}, v{T+5}")
        a(f"v_mul_f32 v{s.vSL}, {f32(1.0/640)}, v{St}")
        a(f"v_mul_f32 v{s.vSL+1}, {f32(1.0/640)}, v{St+1}")
        a(f"v_fma_f32 v{s.vSL+1}, -v{s.vSL}, v{s.vSL}, v{s.vSL+1}")
        a(f"v_max_f32 v{s.vSL+1}, 0, v{s.vSL+1}")
        s.rowparams(a, mlp)
        a(f"L_{tag}_fin2:")
        a("s_waitcnt lgkmcnt(0)")
        a("s_barrier")

    def xsum(s,a,src,t0,t1):
        a(f"v_mov_b32 v{t0}, v{src}")
        a(f"v_mov_b32 v{t1}, v{src}")
        a("s_nop 1")
        a(f"v_permlane32_swap_b32 v{t0}, v{t1}")
        a("s_nop 1")
        a(f"v_add_f32 v{src}, v{t0}, v{t1}")
    def bfr(s,a,v):
        a(f"v_cvt_pk_bf16_f32 v{v}, v{v}, v{v}")
        a(f"v_and_b32 v{v}, 0xffff0000, v{v}")

    def rowparams(s,a,mlp):
        T=s.vT; tag=s.tag
        a(f"v_mov_b32 v{T}, v{s.vSL}")
        a(f"v_mov_b32 v{T+1}, v{s.vSL+1}")
        a(f"v_mov_b32 v{T+2}, v{T}"); s.bfr(a,T+2)
        a(f"v_mov_b32 v{T+3}, v{T+1}"); s.bfr(a,T+3)
        a(f"v_add_f32 v{T+3}, {f32(1e-5)}, v{T+3}"); s.bfr(a,T+3)
        a(f"v_sqrt_f32 v{T+3}, v{T+3}"); a("s_nop 0"); s.bfr(a,T+3)
        a(f"v_rcp_f32 v{T+4}, v{T+3}"); a("s_nop 0")
        a(f"v_mul_f32 v{T+5}, v{T+2}, v{T+4}")
        if not mlp:
            a("s_cmp_eq_u32 s22, 0")
            a(f"s_cbranch_scc0 L_{tag}_rs_nq")
            a(f"v_mul_f32 v{T+4}, {f32(QSCALE)}, v{T+4}")
            a(f"v_mul_f32 v{T+5}, {f32(QSCALE)}, v{T+5}")
            a(f"L_{tag}_rs_nq:")
        else:
            a(f"v_sub_f32 v{T+6}, v{T}, v{T+2}")
            a(f"v_mul_f32 v{T+6}, v{T+6}, v{T+4}"); s.bfr(a,T+6)
            a(f"v_mul_f32 v{T+7}, v{T+1}, v{T+4}")
            a(f"v_mul_f32 v{T+7}, v{T+7}, v{T+4}"); s.bfr(a,T+7)
            a(f"v_add_f32 v{T+7}, {f32(1e-5)}, v{T+7}"); s.bfr(a,T+7)
            a(f"v_sqrt_f32 v{T+7}, v{T+7}"); a("s_nop 0"); s.bfr(a,T+7)
            a(f"v_rcp_f32 v{T+7}, v{T+7}"); a("s_nop 0")
            a(f"v_add_f32 v{T+5}, v{T+5}, v{T+6}")
            a(f"v_mul_f32 v{T+5}, v{T+5}, v{T+7}")
            a(f"v_mul_f32 v{T+4}, v{T+4}, v{T+7}")
        a(f"s_lshl_b32 s37, s24, 7")
        a(f"s_add_u32 s37, s37, {s.L_ROWA}")
        a(f"v_lshl_add_u32 v{T+6}, v{s.vL31}, 2, s37")
        a(f"ds_write_b32 v{T+6}, v{T+4}")
        a(f"ds_write_b32 v{T+6}, v{T+5} offset:512")
    def colparams(s,a,mlp):
        T=s.vT
        a(f"v_add_f32 v{s.vSt+4}, v{s.vSL+4}, v{s.vSL+5}")
        for r in range(2,8): a(f"v_add_f32 v{s.vSt+4}, v{s.vSt+4}, v{s.vSL+4+r}")
        s.xsum(a,s.vSt+4,T,T+1)
        a(f"s_lshl_b32 s37, s40, 7")
        a(f"s_add_u32 s37, s37, {s.L_CS}")
        a(f"v_lshl_add_u32 v{T+6}, v{s.vL31}, 2, s37")
        a(f"ds_write_b32 v{T+6}, v{s.vSt+4}")
        if mlp:
            a(f"v_lshlrev_b32 v{s.vBias}, 16, v{s.vBias}")
            a(f"ds_write_b32 v{T+6}, v{s.vBias} offset:512")
    def statloads(s,a,j,csoff,cspitch,sc):
        T=s.vT
        if j==1:
            a("s_lshl_b32 s37, s20, 7")
            a("s_lshl_b32 s38, s24, 5")
            a("s_add_u32 s37, s37, s38")
            a("s_lshl_b32 s37, s37, 7")
            a(f"v_lshlrev_b32 v{T}, 7, v{s.vL31}")
            a(f"buffer_load_dwordx4 {vr(s.vSL,4)}, v{T}, s[84:87], s37 offen{sc}")
        a("s_lshl_b32 s38, s40, 7")
        a(f"s_add_u32 s37, {csoff}, s38")
        a(f"v_lshlrev_b32 v{T+1}, 2, v{s.vL31}")
        a(f"v_mul_u32_u24 v{T+2}, {8*cspitch}, v{s.vH}")
        a(f"v_add_u32 v{T+1}, v{T+1}, v{T+2}")
        for r in range(8):
            a(f"buffer_load_dword v{s.vSL+4+r}, v{T+1}, s[84:87], s37 offen{sc}")
            if r<7: a(f"s_add_u32 s37, s37, {cspitch}")

    def gelu_pair(s,a,u,t):
        a(f"v_pk_mul_f32 {vr(t,2)}, {vr(u,2)}, {vr(u,2)}")
        a(f"v_pk_fma_f32 {vr(t,2)}, {vr(t,2)}, s[50:51], {vr(s.vK,2)}")
        a(f"v_pk_mul_f32 {vr(t,2)}, {vr(t,2)}, {vr(u,2)}")
        a(f"v_exp_f32 v{t}, v{t}")
        a(f"v_exp_f32 v{t+1}, v{t+1}")
        a("s_nop 0")
        a(f"v_pk_add_f32 {vr(t,2)}, {vr(t,2)}, 1.0 op_sel_hi:[1,0]")
        a(f"v_rcp_f32 v{t}, v{t}")
        a(f"v_rcp_f32 v{t+1}, v{t+1}")
        a("s_nop 0")
        a(f"v_pk_mul_f32 {vr(u,2)}, {vr(u,2)}, {vr(t,2)}")

    def epi_ct(s,a,j,typ,sc=""):
        nt=s.nslots(j); T=s.vT; tag=f"L_{s.tag}_e{typ}{j}"
        Al=T; Be=T+2
        a(f"s_lshl_b32 s37, s24, 7")
        a(f"s_add_u32 s37, s37, {s.L_ROWA}")
        a(f"v_lshl_add_u32 v{T+4}, v{s.vL31}, 2, s37")
        a(f"ds_read_b32 v{Al}, v{T+4}")
        a(f"ds_read_b32 v{Be}, v{T+4} offset:512")
        a(f"s_lshl_b32 s38, s20, 7")
        a(f"s_lshl_b32 s39, s24, 5")
        a(f"s_add_u32 s38, s38, s39")
        a(f"v_add_u32 v{T+5}, s38, v{s.vL31}")
        a(f"v_and_b32 v{T+9}, 1, v{s.vLn}")
        if typ==0:
            a(f"v_lshlrev_b32 v{T+6}, 3, v{T+5}")
            a(f"v_lshl_add_u32 v{T+6}, v{s.vH}, 14, v{T+6}")
            a(f"v_mul_u32_u24 v{T+7}, 32760, v{T+9}")
            a(f"v_add_u32 v{T+6}, v{T+6}, v{T+7}")
        elif typ==1:
            a(f"s_lshr_b32 s39, s38, 5")
            a(f"s_mul_i32 s39, s39, 3072")
            a(f"v_and_b32 v{T+6}, 30, v{s.vL31}")
            a(f"v_lshl_add_u32 v{T+6}, v{T+6}, 3, s39")
            a(f"v_lshl_add_u32 v{T+7}, v{T+9}, 1, v{s.vH}")
            a(f"v_mov_b32 v{s.vK}, 0x3f80")
            a(f"v_mov_b32 v{s.vK+1}, 0")
            a(f"v_mov_b32 v{s.vK+2}, 0x3f80")
            a(f"v_mov_b32 v{s.vK+3}, 0")
        else:
            a(f"v_lshlrev_b32 v{T+6}, 3, v{T+5}")
            a(f"v_lshl_add_u32 v{T+6}, v{s.vH}, 14, v{T+6}")
            a(f"v_mul_u32_u24 v{T+7}, 32760, v{T+9}")
            a(f"v_add_u32 v{T+6}, v{T+6}, v{T+7}")
            c1=-2.0*0.7978845608028654*1.4426950408889634
            c2=c1*0.044715
            a(f"s_mov_b32 s50, {f32(c2)}"); a(f"s_mov_b32 s51, {f32(c2)}")
            a(f"v_mov_b32 v{s.vK}, {f32(c1)}"); a(f"v_mov_b32 v{s.vK+1}, {f32(c1)}")
        a(f"v_lshlrev_b32 v{T+8}, 4, v{s.vH}")
        a(f"v_add_u32 v{T+8}, {s.L_CS}, v{T+8}")
        CS=s.vE
        for k in range(nt):
            a(f"s_lshl_b32 s37, s{40+k}, 7")
            a(f"v_add_u32 v{T+9}, s37, v{T+8}")
            for g in range(4): a(f"ds_read_b128 {vr(CS+4*g,4)}, v{T+9} offset:{32*g}")
            if typ==3:
                for g in range(4): a(f"ds_read_b128 {vr(CS+16+4*g,4)}, v{T+9} offset:{512+32*g}")
            a("s_waitcnt lgkmcnt(0)")
            acc=s.vAcc+16*k
            for pr in range(8):
                c=CS+2*pr; u=acc+2*pr
                if typ==3:
                    a(f"v_pk_fma_f32 {vr(c,2)}, {vr(c,2)}, {vr(Be,2)}, {vr(c+16,2)} op_sel_hi:[1,0,1] neg_lo:[0,0,1] neg_hi:[0,0,1]")
                else:
                    a(f"v_pk_mul_f32 {vr(c,2)}, {vr(c,2)}, {vr(Be,2)} op_sel_hi:[1,0]")
                a(f"v_pk_fma_f32 {vr(u,2)}, {vr(u,2)}, {vr(Al,2)}, {vr(c,2)} op_sel_hi:[1,0,1] neg_lo:[0,0,1] neg_hi:[0,0,1]")
            if typ==3:
                for pr in range(8): s.gelu_pair(a, acc+2*pr, T+10+2*(pr%2))
            PK=CS+32
            for pr in range(8): a(f"v_cvt_pk_bf16_f32 v{PK+pr}, v{acc+2*pr}, v{acc+2*pr+1}")
            a("s_mov_b32 vcc_lo, 0xaaaaaaaa")
            a("s_mov_b32 vcc_hi, 0xaaaaaaaa")
            for gp in range(2):
                O=PK+4*gp
                a(f"v_mov_b32_dpp v{T+14}, v{O+2} quad_perm:[1,0,3,2] row_mask:0xf bank_mask:0xf")
                a(f"v_mov_b32_dpp v{T+15}, v{O+3} quad_perm:[1,0,3,2] row_mask:0xf bank_mask:0xf")
                a(f"v_cndmask_b32_dpp v{O+2}, v{O}, v{O+2}, vcc quad_perm:[1,0,3,2] row_mask:0xf bank_mask:0xf")
                a(f"v_cndmask_b32_dpp v{O+3}, v{O+1}, v{O+3}, vcc quad_perm:[1,0,3,2] row_mask:0xf bank_mask:0xf")
                a(f"v_cndmask_b32 v{O}, v{O}, v{T+14}, vcc")
                a(f"v_cndmask_b32 v{O+1}, v{O+1}, v{T+15}, vcc")
            if typ in (0,3):
                a(f"s_lshl_b32 s37, s{40+k}, 3")
                a(f"s_add_u32 s37, s37, s35")
                a(f"s_lshl_b32 s37, s37, 14")
                for gp in range(2):
                    a(f"buffer_store_dwordx4 {vr(PK+4*gp,4)}, v{T+6}, s[16:19], s37 offen{sc}")
                    if gp<1: a(f"s_add_u32 s37, s37, 65536")
            else:
                a(f"s_lshl_b32 s39, s{40+k}, 3")
                a(f"s_add_u32 s37, s35, s39")
                for gp in range(2):
                    a(f"v_add_u32 v{T+10}, s37, v{T+7}")
                    if gp: a(f"v_add_u32 v{T+10}, 4, v{T+10}")
                    a(f"v_mul_u32_u24 v{T+11}, 205, v{T+10}")
                    a(f"v_lshrrev_b32 v{T+11}, 10, v{T+11}")
                    a(f"v_mul_u32_u24 v{T+12}, 5, v{T+11}")
                    a(f"v_sub_u32 v{T+12}, v{T+10}, v{T+12}")
                    a(f"v_mul_u32_u24 v{T+13}, 0x30000, v{T+11}")
                    a(f"v_lshl_add_u32 v{T+13}, v{T+12}, 8, v{T+13}")
                    a(f"v_add_u32 v{T+13}, v{T+13}, v{T+6}")
                    a(f"v_cmp_eq_u32 vcc, 4, v{T+12}")
                    a(f"buffer_store_dwordx4 {vr(PK+4*gp,4)}, v{T+13}, s[16:19], 0 offen{sc}")
                    a("s_and_saveexec_b64 s[54:55], vcc")
                    a(f"s_cbranch_execz {tag}_nc{k}{gp}")
                    a(f"buffer_store_dwordx4 {vr(s.vK,4)}, v{T+13}, s[16:19], 0 offen offset:256{sc}")
                    a(f"{tag}_nc{k}{gp}:")
                    a("s_mov_b64 exec, s[54:55]")
            a("s_nop 1")

    def epi_v(s,a,j,sc=""):
        nt=s.nslots(j); T=s.vT; tag=f"L_{s.tag}_e2{j}"
        AL=s.vE; BE=s.vE+16; P=s.vE+32
        a(f"s_lshl_b32 s37, s24, 7")
        a(f"s_add_u32 s37, s37, {s.L_ROWA}")
        a(f"v_lshl_add_u32 v{T+4}, v{s.vH}, 4, s37")
        for g in range(4):
            a(f"ds_read_b128 {vr(AL+4*g,4)}, v{T+4} offset:{32*g}")
            a(f"ds_read_b128 {vr(BE+4*g,4)}, v{T+4} offset:{512+32*g}")
        a(f"s_lshl_b32 s38, s20, 2")
        a(f"s_add_u32 s38, s38, s24")
        a(f"s_mul_i32 s38, s38, 3072")
        a(f"s_add_u32 s38, s38, 1536")
        a(f"v_mul_u32_u24 v{T+5}, 384, v{s.vH}")
        a(f"v_add_u32 v{T+5}, s38, v{T+5}")
        a(f"v_lshlrev_b32 v{T+8}, 2, v{s.vL31}")
        a(f"v_add_u32 v{T+8}, {s.L_CS}, v{T+8}")
        for k in range(nt):
            a(f"s_lshl_b32 s37, s{40+k}, 7")
            a(f"v_add_u32 v{T+9}, s37, v{T+8}")
            a(f"ds_read_b32 v{T}, v{T+9}")
            a(f"s_lshl_b32 s37, s35, 2")
            a(f"s_lshl_b32 s39, s{40+k}, 5")
            a(f"s_add_u32 s37, s37, s39")
            a(f"v_add_u32 v{T+10}, s37, v{s.vL31}")
            a(f"v_mul_u32_u24 v{T+11}, 3277, v{T+10}")
            a(f"v_lshrrev_b32 v{T+11}, 16, v{T+11}")
            a(f"v_mul_u32_u24 v{T+12}, 20, v{T+11}")
            a(f"v_sub_u32 v{T+12}, v{T+10}, v{T+12}")
            a(f"v_mul_u32_u24 v{T+13}, 0x30000, v{T+11}")
            a(f"v_lshl_add_u32 v{T+13}, v{T+12}, 4, v{T+13}")
            a(f"v_add_u32 v{T+13}, v{T+13}, v{T+5}")
            a("s_waitcnt lgkmcnt(0)")
            acc=s.vAcc+16*k
            for pr in range(8):
                u=acc+2*pr
                a(f"v_pk_mul_f32 {vr(T+2,2)}, {vr(BE+2*pr,2)}, {vr(T,2)} op_sel_hi:[1,0]")
                a(f"v_pk_fma_f32 {vr(u,2)}, {vr(u,2)}, {vr(AL+2*pr,2)}, {vr(T+2,2)} neg_lo:[0,0,1] neg_hi:[0,0,1]")
            for pr in range(8): a(f"v_cvt_pk_bf16_f32 v{P+pr}, v{acc+2*pr}, v{acc+2*pr+1}")
            a(f"buffer_store_dwordx4 {vr(P,4)}, v{T+13}, s[16:19], 0 offen{sc}")
            a(f"buffer_store_dwordx4 {vr(P+4,4)}, v{T+13}, s[16:19], 0 offen offset:768{sc}")
            a(f"v_cmp_eq_u32 vcc, 0, v{T+12}")
            a(f"v_mov_b32 v{T+14}, 0x3f803f80")
            a("s_nop 0")
            for r in range(4): a(f"v_cndmask_b32 v{P+8+r}, 0, v{T+14}, vcc")
            a(f"v_cmp_gt_u32 vcc, 4, v{T+12}")
            a("s_and_saveexec_b64 s[54:55], vcc")
            a(f"s_cbranch_execz {tag}_nc{k}")
            a(f"buffer_store_dwordx4 {vr(P+8,4)}, v{T+13}, s[16:19], 0 offen offset:320{sc}")
            a(f"buffer_store_dwordx4 {vr(P+8,4)}, v{T+13}, s[16:19], 0 offen offset:1088{sc}")
            a(f"{tag}_nc{k}:")
            a("s_mov_b64 exec, s[54:55]")
            a("s_nop 1")


class G2(G):
    def __init__(s, tag, NC):
        G.__init__(s, tag, NC, 4, 0)
        s.BK=32; s.XS=8192
        s.WSTG=32*s.WP
        s.WOFF=4*s.XS
        s.L_ROWA=s.WOFF+4*s.WSTG; s.L_ROWB=s.L_ROWA+512; s.L_CS=s.L_ROWB+512; s.L_BIAS=s.L_CS+512
        s.L_SCR=s.L_BIAS+512; s.L_EX=s.L_SCR+2048
        s.LDS=s.L_EX+2048
        s.nW=s.WSTG//1024
        s.vDma=4; s.vB=6; s.vXa=8; s.vBias=10; s.vK=12; s.vCSa=16; s.vSel=20
        s.vT=24; s.vRS=32; s.vSt=32; s.vSL=38
        s.vAcc=40; s.vF=72; s.vE=72
    def nd(s,j): return 2
    def bread(s,a,dst,buf,t,k):
        off=buf*s.WSTG+(16*t)*s.WP
        for half in range(2):
            a(f"ds_read_b64_tr_b16 {vr(dst+2*half,2)}, v{s.vB+k} offset:{off+half*4*s.WP}")
    def aread(s,a,dst,buf,t):
        a(f"ds_read_b128 {vr(dst,4)}, v{s.vXa+t} offset:{buf*s.XS}")
    def dma_items(s,st,j):
        b=st%4
        return [[f"s_add_u32 m0, s49, {b*s.XS}", "s_nop 0", f"buffer_load_dwordx4 v{s.vDma+1}, s[8:11], s48 offen lds", "s_add_u32 s48, s48, 64"],
                [f"s_add_u32 m0, s28, {s.WOFF+b*s.WSTG}", "s_nop 0", f"buffer_load_dwordx4 v{s.vDma}, s[12:15], s34 offen lds", "s_add_u32 s34, s34, s33"]]
    def lane_setup(s,a):
        T=s.vT
        a(f"s_min_u32 s37, s23, {s.nW-1}")
        a(f"s_lshl_b32 s28, s37, 10")
        a(f"v_lshl_add_u32 v{T}, v{s.vLn}, 4, s28")
        if s.NC==4:
            a(f"v_lshrrev_b32 v{T+1}, 8, v{T}")
            a(f"v_bfe_u32 v{T+2}, v{T}, 4, 4")
            a(f"v_and_b32 v{T+3}, 3, v{T+1}")
            a(f"v_lshlrev_b32 v{T+3}, 2, v{T+3}")
            a(f"v_xor_b32 v{T+2}, v{T+2}, v{T+3}")
            a(f"v_lshlrev_b32 v{T+2}, 4, v{T+2}")
        else:
            a(f"v_lshrrev_b32 v{T+1}, 6, v{T}")
            a(f"v_mul_u32_u24 v{T+1}, 21846, v{T+1}")
            a(f"v_lshrrev_b32 v{T+1}, 16, v{T+1}")
            a(f"v_mul_u32_u24 v{T+2}, 192, v{T+1}")
            a(f"v_sub_u32 v{T+2}, v{T}, v{T+2}")
        a(f"v_mul_lo_u32 v{T+1}, v{T+1}, s26")
        a(f"s_lshl_b32 s37, s27, 1")
        a(f"v_add3_u32 v{s.vDma}, v{T+1}, v{T+2}, s37")
        a("s_lshl_b32 s49, s23, 10")
        a(f"s_lshl_b32 s37, s23, 4")
        a(f"v_lshrrev_b32 v{T}, 2, v{s.vLn}")
        a(f"v_add_u32 v{T}, s37, v{T}")
        a(f"v_bfe_u32 v{T+1}, v{T}, 2, 2")
        a(f"v_and_b32 v{T+2}, 3, v{s.vLn}")
        a(f"v_xor_b32 v{T+1}, v{T+1}, v{T+2}")
        a("s_lshl_b32 s38, s20, 7")
        a(f"v_add_u32 v{T}, s38, v{T}")
        a(f"v_mul_u32_u24 v{T}, 1280, v{T}")
        a(f"v_lshl_add_u32 v{s.vDma+1}, v{T+1}, 4, v{T}")
        a("s_lshl_b32 s33, s26, 5")
        a("s_lshl_b32 s37, s25, 1")
        a("s_and_b32 s38, s24, 1")
        if s.NC==3:
            a("s_cmp_eq_u32 s25, 0")
            a("s_cselect_b32 s38, s38, 0")
        a("s_add_u32 s40, s37, s38")
        a("s_xor_b32 s41, s40, 1")
    def setup2(s,a):
        T=s.vT
        a("s_lshl_b32 s37, s24, 5")
        a(f"v_add_u32 v{T}, s37, v{s.vL31}")
        a(f"v_bfe_u32 v{T+1}, v{T}, 2, 2")
        a(f"v_lshlrev_b32 v{T}, 6, v{T}")
        for t in range(2):
            a(f"v_add_u32 v{T+2}, {2*t}, v{s.vH}")
            a(f"v_xor_b32 v{T+2}, v{T+2}, v{T+1}")
            a(f"v_lshl_add_u32 v{s.vXa+t}, v{T+2}, 4, v{T}")
        a(f"v_bfe_u32 v{T}, v{s.vLn}, 2, 2")
        a(f"v_lshl_add_u32 v{T+3}, v{s.vH}, 3, v{T}")
        a(f"v_mul_u32_u24 v{T+3}, {s.WP}, v{T+3}")
        a(f"v_and_b32 v{T+1}, 3, v{s.vLn}")
        a(f"v_lshl_add_u32 v{T+3}, v{T+1}, 3, v{T+3}")
        a(f"v_bfe_u32 v{T+1}, v{s.vLn}, 4, 1")
        a(f"v_lshl_add_u32 v{T+3}, v{T+1}, 5, v{T+3}")
        for k in range(2):
            if s.swz:
                a(f"v_xor_b32 v{T+2}, s{40+k}, v{T}")
                a(f"v_lshl_add_u32 v{s.vB+k}, v{T+2}, 6, v{T+3}")
                a(f"v_add_u32 v{s.vB+k}, {s.WOFF}, v{s.vB+k}")
            else:
                a(f"s_lshl_b32 s37, s{40+k}, 6")
                a(f"s_add_u32 s37, s37, {s.WOFF}")
                a(f"v_add_u32 v{s.vB+k}, s37, v{T+3}")
    def loop(s,a,j,cform,tag):
        nt=s.nslots(j); nd=2; R=4; NST=20
        vF=76
        vF=s.vF
        def fa(p,t): return vF+24*p+4*t
        def fb(p,t,k): return vF+24*p+8+(t*2+k)*4
        def reads(p,st):
            for t in range(2):
                s.aread(a,fa(p,t),st%R,t)
                for k in range(nt): s.bread(a,fb(p,t,k),st%R,t,k)
        detf(a,1)
        a("s_mov_b32 s48, 0")
        a("s_mov_b32 s34, 0")
        for st in range(R): s.dma(a,st,j)
        detf(a,2)
        s.setup2(a)
        T=s.vT
        a(f"v_and_b32 v{T}, 15, v{s.vLn}")
        a(f"v_lshrrev_b32 v{T+1}, 4, v{s.vLn}")
        a(f"v_cmp_eq_u32 vcc, v{T}, v{T+1}")
        a(f"v_mov_b32 v{T+2}, 0x3f803f80")
        a("s_nop 0")
        for r in range(4): a(f"v_cndmask_b32 v{s.vSel+r}, 0, v{T+2}, vcc")
        for r in range(4): a(f"v_mov_b32 v{s.vRS+r}, 0")
        for r in range(4): a(f"v_mov_b32 v{s.vCSa+r}, 0")
        for r in range(16*nt): a(f"v_mov_b32 v{s.vAcc+r}, 0")
        a("s_cmp_lt_u32 s24, 2")
        a("s_cselect_b64 vcc, -1, 0")
        a("s_mov_b32 s42, 0")
        a(f"s_waitcnt vmcnt({(R-1)*nd})")
        a("s_barrier")
        detf(a,3)
        reads(0,0)
        def stage(st, lab):
            p=st%2
            pend=[]
            a("s_waitcnt lgkmcnt(0)")
            if st<NST-1:
                infl=max(0,min(R-2, NST-2-st))
                a(f"s_waitcnt vmcnt({infl*nd})")
                a("s_barrier")
                if st+R<NST: pend=s.dma_items(st+R,j)
                reads(1-p, st+1)
            for t in range(2):
                Af=fa(p,t)
                for k in range(nt):
                    acc=s.vAcc+16*k
                    C=vr(acc,16)
                    B=fb(p,t,k)
                    if cform: a(f"v_mfma_f32_32x32x16_bf16 {vr(acc,16)}, {vr(Af,4)}, {vr(B,4)}, {C}")
                    else:     a(f"v_mfma_f32_32x32x16_bf16 {vr(acc,16)}, {vr(B,4)}, {vr(Af,4)}, {C}")
                    if pend:
                        for l in pend.pop(0): a(l)
                    rr=[2*j, 2*j+1] if nt==1 else [2*j+k]
                    for r in rr:
                        t0=s.vRS+4+2*(r&1)
                        a(f"v_lshlrev_b32 v{t0}, 16, v{Af+r}")
                        a(f"v_and_b32 v{t0+1}, 0xffff0000, v{Af+r}")
                        a(f"v_add_f32 v{s.vRS}, v{s.vRS}, v{t0}")
                        a(f"v_add_f32 v{s.vRS+1}, v{s.vRS+1}, v{t0+1}")
                        a(f"v_fmac_f32 v{s.vRS+2}, v{t0}, v{t0}")
                        a(f"v_fmac_f32 v{s.vRS+3}, v{t0+1}, v{t0+1}")
            a(f"s_cbranch_vccz L_{tag}_ns{lab}")
            for t in range(2):
                a(f"v_mfma_f32_16x16x32_bf16 {vr(s.vCSa,4)}, {vr(fb(p,t,0),4)}, {vr(s.vSel,4)}, {vr(s.vCSa,4)}")
            a(f"L_{tag}_ns{lab}:")
            assert not pend
        a(f"L_{tag}_loop:")
        for st in range(4): stage(st, st)
        a("s_add_u32 s42, s42, 1")
        a("s_cmp_lt_u32 s42, 4")
        a(f"s_cbranch_scc1 L_{tag}_loop")
        for st in range(16,20): stage(st, st)


class G3(G2):
    def __init__(s, tag, NC):
        G2.__init__(s, tag, NC)
        s.XS=16384
        s.xa=[8,9,14,15]
        s.vX2=11
    def aread(s,a,dst,st,t):
        a(f"ds_read_b128 {vr(dst,4)}, v{s.xa[(st&1)*2+t]} offset:{((st>>1)&1)*s.XS}")
    def w_item(s,st):
        b=st%4
        return [f"s_add_u32 m0, s28, {s.WOFF+b*s.WSTG}", "s_nop 0", f"buffer_load_dwordx4 v{s.vDma}, s[12:15], s34 offen lds", "s_add_u32 s34, s34, s33"]
    def x_items(s,m):
        b=m%2
        return [[f"s_add_u32 m0, s49, {b*s.XS}", "s_nop 0", f"buffer_load_dwordx4 v{s.vDma+1}, s[8:11], s48 offen lds"],
                [f"s_add_u32 m0, s49, {b*s.XS+1024}", "s_nop 0", f"buffer_load_dwordx4 v{s.vX2}, s[8:11], s48 offen lds", "s_add_u32 s48, s48, 128"]]
    def lane_setup(s,a):
        G2.lane_setup(s,a)
        T=s.vT
        a("s_lshl_b32 s49, s23, 11")
        for q in range(2):
            a(f"s_lshl_b32 s37, s23, 4")
            a(f"s_add_u32 s37, s37, {8*q}")
            a(f"v_lshrrev_b32 v{T}, 3, v{s.vLn}")
            a(f"v_add_u32 v{T}, s37, v{T}")
            a(f"v_bfe_u32 v{T+1}, v{T}, 1, 3")
            a(f"v_and_b32 v{T+2}, 7, v{s.vLn}")
            a(f"v_xor_b32 v{T+1}, v{T+1}, v{T+2}")
            a("s_lshl_b32 s38, s20, 7")
            a(f"v_add_u32 v{T}, s38, v{T}")
            a(f"v_mul_u32_u24 v{T}, 1280, v{T}")
            a(f"v_lshl_add_u32 v{(s.vDma+1) if q==0 else s.vX2}, v{T+1}, 4, v{T}")
    def setup2(s,a):
        G2.setup2(s,a)
        T=s.vT
        a("s_lshl_b32 s37, s24, 5")
        a(f"v_add_u32 v{T}, s37, v{s.vL31}")
        a(f"v_bfe_u32 v{T+1}, v{T}, 1, 3")
        a(f"v_lshlrev_b32 v{T}, 7, v{T}")
        for t in range(4):
            a(f"v_add_u32 v{T+2}, {2*t}, v{s.vH}")
            a(f"v_xor_b32 v{T+2}, v{T+2}, v{T+1}")
            a(f"v_lshl_add_u32 v{s.xa[t]}, v{T+2}, 4, v{T}")
    def loop(s,a,j,cform,tag):
        nt=s.nslots(j); R=4; NST=20
        vF=s.vF
        def fa(p,t): return vF+24*p+4*t
        def fb(p,t,k): return vF+24*p+8+(t*2+k)*4
        def reads(p,st):
            for t in range(2):
                s.aread(a,fa(p,t),st%R,t)
                for k in range(nt): s.bread(a,fb(p,t,k),st%R,t,k)
        def emit(it):
            for l in it: a(l)
        detf(a,1)
        a("s_mov_b32 s48, 0")
        a("s_mov_b32 s34, 0")
        for it in s.x_items(0): emit(it)
        emit(s.w_item(0)); emit(s.w_item(1))
        for it in s.x_items(1): emit(it)
        emit(s.w_item(2)); emit(s.w_item(3))
        detf(a,2)
        s.setup2(a)
        T=s.vT
        a(f"v_and_b32 v{T}, 15, v{s.vLn}")
        a(f"v_lshrrev_b32 v{T+1}, 4, v{s.vLn}")
        a(f"v_cmp_eq_u32 vcc, v{T}, v{T+1}")
        a(f"v_mov_b32 v{T+2}, 0x3f803f80")
        a("s_nop 0")
        for r in range(4): a(f"v_cndmask_b32 v{s.vSel+r}, 0, v{T+2}, vcc")
        for r in range(4): a(f"v_mov_b32 v{s.vRS+r}, 0")
        for r in range(4): a(f"v_mov_b32 v{s.vCSa+r}, 0")
        for r in range(16*nt): a(f"v_mov_b32 v{s.vAcc+r}, 0")
        a("s_cmp_lt_u32 s24, 2")
        a("s_cselect_b64 vcc, -1, 0")
        a("s_mov_b32 s42, 0")
        a("s_waitcnt vmcnt(5)")
        a("s_barrier")
        detf(a,3)
        reads(0,0)
        def stage(st, lab, tail):
            p=st%2
            pend=[]
            a("s_waitcnt lgkmcnt(0)")
            if st<NST-1:
                if not tail:
                    n = 1 if (st%2==1) else 4
                else:
                    n = {16:3, 17:0, 18:0}[st]
                a(f"s_waitcnt vmcnt({n})")
                a("s_barrier")
                if st%2==1 and (st+3)//2 < 10: pend+=s.x_items((st+3)//2)
                if st+R<NST: pend.append(s.w_item(st+R))
                reads(1-p, st+1)
            for t in range(2):
                Af=fa(p,t)
                for k in range(nt):
                    acc=s.vAcc+16*k
                    C=vr(acc,16)
                    B=fb(p,t,k)
                    if cform: a(f"v_mfma_f32_32x32x16_bf16 {vr(acc,16)}, {vr(Af,4)}, {vr(B,4)}, {C}")
                    else:     a(f"v_mfma_f32_32x32x16_bf16 {vr(acc,16)}, {vr(B,4)}, {vr(Af,4)}, {C}")
                    for _ in range(1 if nt==2 else 2):
                        if pend: emit(pend.pop(0))
                    rr=[2*j, 2*j+1] if nt==1 else [2*j+k]
                    for r in rr:
                        t0=s.vRS+4+2*(r&1)
                        a(f"v_lshlrev_b32 v{t0}, 16, v{Af+r}")
                        a(f"v_and_b32 v{t0+1}, 0xffff0000, v{Af+r}")
                        a(f"v_add_f32 v{s.vRS}, v{s.vRS}, v{t0}")
                        a(f"v_add_f32 v{s.vRS+1}, v{s.vRS+1}, v{t0+1}")
                        a(f"v_fmac_f32 v{s.vRS+2}, v{t0}, v{t0}")
                        a(f"v_fmac_f32 v{s.vRS+3}, v{t0+1}, v{t0+1}")
            a(f"s_cbranch_vccz L_{tag}_ns{lab}")
            for t in range(2):
                a(f"v_mfma_f32_16x16x32_bf16 {vr(s.vCSa,4)}, {vr(fb(p,t,0),4)}, {vr(s.vSel,4)}, {vr(s.vCSa,4)}")
            a(f"L_{tag}_ns{lab}:")
            assert not pend
        a(f"L_{tag}_loop:")
        for st in range(4): stage(st, st, False)
        a("s_add_u32 s42, s42, 1")
        a("s_cmp_lt_u32 s42, 4")
        a(f"s_cbranch_scc1 L_{tag}_loop")
        for st in range(16,20): stage(st, st, True)
```

```python
from common import *
import gemm1
gb=gemm1.G3('b1',3)
import struct
def f32(x): return "0x%08x" % struct.unpack("<I", struct.pack("<f", x))[0]
SG=20480
vLn=2; vL15=3; vG=1
vDm=4
vAo=7
vBa=8
vRw=9
vT=10
vAcc=20
vAr=60
vBf=100
vKG=120
L_DEC=61440
PRIO=[1,0]
WITH_B1=[True]
DELAYB=[0]

def sig_mul(a, u, t, n):
    for i in range(n): a(f"v_mul_f32 v{t+i}, {f32(-1.4426950408889634)}, v{u+i}")
    for i in range(n): a(f"v_exp_f32 v{t+i}, v{t+i}")
    a("s_nop 0")
    for i in range(n): a(f"v_add_f32 v{t+i}, 1.0, v{t+i}")
    for i in range(n): a(f"v_rcp_f32 v{t+i}, v{t+i}")
    a("s_nop 0")
    for i in range(n): a(f"v_mul_f32 v{u+i}, v{u+i}, v{t+i}")
def rnd(a, u, n):
    for i in range(0,n,2):
        a(f"v_cvt_pk_bf16_f32 v{u+i}, v{u+i}, v{u+i+1}")
        a(f"v_and_b32 v{u+i+1}, 0xffff0000, v{u+i}")
        a(f"v_lshlrev_b32 v{u+i}, 16, v{u+i}")
def unpack(a, dst, src, n):
    for i in range(n):
        a(f"v_lshlrev_b32 v{dst+2*i}, 16, v{src+i}")
        a(f"v_and_b32 v{dst+2*i+1}, 0xffff0000, v{src+i}")

def aload(a, r, s, srdn, sc=""):
    a(f"s_mov_b32 s34, {s*32*16384}")
    a(f"s_add_u32 s35, s34, {4*16384}")
    a(f"buffer_load_dwordx2 {vr(r,2)}, v{vAo}, s[{srdn}:{srdn+3}], s34 offen{sc}")
    a(f"buffer_load_dwordx2 {vr(r+2,2)}, v{vAo}, s[{srdn}:{srdn+3}], s35 offen{sc}")
    a(f"buffer_load_dwordx2 {vr(r+4,2)}, v{vAo}, s[{srdn}:{srdn+3}], s34 offen offset:128{sc}")
    a(f"buffer_load_dwordx2 {vr(r+6,2)}, v{vAo}, s[{srdn}:{srdn+3}], s35 offen offset:128{sc}")
def wdma(a, s, slot, nd, srdn):
    a(f"s_mov_b32 s34, {s*128*1280}")
    for q in range(nd):
        a(f"s_add_u32 m0, s{28+q}, {slot*SG}")
        a("s_nop 0")
        a(f"buffer_load_dwordx4 v{vDm+q}, s[{srdn}:{srdn+3}], s34 offen lds")
def bfr(a, dst, slot):
    for ct in range(5):
        o=slot*SG+ct*32
        a(f"ds_read_b64_tr_b16 {vr(dst+4*ct,2)}, v{vBa} offset:{o}")
        a(f"ds_read_b64_tr_b16 {vr(dst+4*ct+2,2)}, v{vBa} offset:{o+16*160}")
def mm(a, A, B, first):
    for ct in range(5):
        for tt in range(2):
            acc=vAcc+4*(ct*2+tt)
            C="0" if first else vr(acc,4)
            a(f"v_mfma_f32_16x16x32_bf16 {vr(acc,4)}, {vr(B+4*ct,4)}, {vr(A+4*tt,4)}, {C}")

def reduce_write(a):
    a("s_barrier")
    a("s_nop 4")
    for ct in range(5):
        for tt in range(2):
            acc=vAcc+4*(ct*2+tt)
            a(f"ds_write_b128 v{vRw}, {vr(acc,4)} offset:{tt*5120+ct*64}")
    a("s_waitcnt lgkmcnt(0)")
    a("s_barrier")

def item_addr(a, r):
    a(f"v_add_u32 v{vT}, {512*r}, v0")
    a(f"v_min_u32 v{vT}, 639, v{vT}")
    a(f"v_mul_u32_u24 v{vT+1}, 6554, v{vT}")
    a(f"v_lshrrev_b32 v{vT+1}, 16, v{vT+1}")
    a(f"v_mul_u32_u24 v{vT+2}, 10, v{vT+1}")
    a(f"v_sub_u32 v{vT+2}, v{vT}, v{vT+2}")
    a(f"v_bfe_u32 v{vT+6}, v{vT+1}, 1, 2")
    a(f"v_lshlrev_b32 v{vT+7}, 1, v{vT+2}")
    a(f"v_xor_b32 v{vT+7}, v{vT+7}, v{vT+6}")
    a(f"v_mul_u32_u24 v{vT+8}, 320, v{vT+1}")
    a(f"v_lshl_add_u32 v{vT+3}, v{vT+7}, 4, v{vT+8}")
    a(f"v_xor_b32 v{vT+7}, 1, v{vT+7}")
    a(f"v_lshl_add_u32 v{vT+5}, v{vT+7}, 4, v{vT+8}")
    a("s_lshl_b32 s37, s20, 6")
    a(f"v_add_u32 v{vT+4}, s37, v{vT+1}")
    a(f"v_mul_u32_u24 v{vT+4}, 1280, v{vT+4}")
    a(f"v_lshl_add_u32 v{vT+4}, v{vT+2}, 4, v{vT+4}")
    a("s_mul_i32 s37, s21, 160")
    a(f"v_add_u32 v{vT+4}, s37, v{vT+4}")

def item_sum(a):
    P=vAcc
    for kq in range(4):
        a(f"ds_read_b128 {vr(P+8*kq,4)}, v{vT+3} offset:{kq*20480}")
        a(f"ds_read_b128 {vr(P+8*kq+4,4)}, v{vT+5} offset:{kq*20480}")
    a("s_waitcnt lgkmcnt(0)")
    for i in range(8): a(f"v_add_f32 v{P+i}, v{P+i}, v{P+8+i}")
    for i in range(8): a(f"v_add_f32 v{P+16+i}, v{P+16+i}, v{P+24+i}")
    for i in range(8): a(f"v_add_f32 v{P+i}, v{P+i}, v{P+16+i}")
    rnd(a, P, 8)

def setup(a):
    a("s_and_b32 s20, s3, 7")
    a("s_lshl_b32 s20, s20, 2")
    a("s_bfe_u32 s21, s3, 0x20003")
    a("s_add_u32 s20, s20, s21")
    a("s_lshr_b32 s21, s3, 5")
    a(f"v_lshrrev_b32 v{vT}, 6, v0")
    a(f"v_and_b32 v{vLn}, 63, v0")
    a("s_nop 0")
    a(f"v_readfirstlane_b32 s23, v{vT}")
    a(f"v_and_b32 v{vL15}, 15, v{vLn}")
    a(f"v_lshrrev_b32 v{vG}, 4, v{vLn}")
    a("s_and_b32 s24, s23, 1")
    a("s_lshr_b32 s25, s23, 1")
    for q in range(3):
        a(f"s_add_u32 s37, s23, {8*q}")
        a(f"s_min_u32 s37, s37, 19")
        a(f"s_lshl_b32 s{28+q}, s37, 10")
        a(f"v_lshl_add_u32 v{vT}, v{vLn}, 4, s{28+q}")
        a(f"v_lshrrev_b32 v{vT+1}, 5, v{vT}")
        a(f"v_mul_u32_u24 v{vT+1}, 13108, v{vT+1}")
        a(f"v_lshrrev_b32 v{vT+1}, 16, v{vT+1}")
        a(f"v_mul_u32_u24 v{vT+2}, 160, v{vT+1}")
        a(f"v_sub_u32 v{vT+2}, v{vT}, v{vT+2}")
        a(f"v_mul_u32_u24 v{vT+1}, 1280, v{vT+1}")
        a(f"s_mul_i32 s37, s21, 160")
        a(f"v_add3_u32 v{vDm+q}, v{vT+1}, v{vT+2}, s37")
    a("s_lshl_b32 s37, s25, 3")
    a(f"v_add_u32 v{vT}, s37, v{vG}")
    a(f"v_lshlrev_b32 v{vT}, 14, v{vT}")
    a("s_lshl_b32 s37, s20, 6")
    a("s_lshl_b32 s38, s24, 5")
    a("s_add_u32 s37, s37, s38")
    a(f"v_add_u32 v{vT+1}, s37, v{vL15}")
    a(f"v_lshl_add_u32 v{vAo}, v{vT+1}, 3, v{vT}")
    a(f"v_bfe_u32 v{vT}, v{vLn}, 2, 2")
    a(f"v_lshl_add_u32 v{vT}, v{vG}, 2, v{vT}")
    a("s_lshl_b32 s37, s25, 5")
    a(f"v_add_u32 v{vT}, s37, v{vT}")
    a(f"v_mul_u32_u24 v{vT}, 160, v{vT}")
    a(f"v_and_b32 v{vT+1}, 3, v{vLn}")
    a(f"v_lshl_add_u32 v{vBa}, v{vT+1}, 3, v{vT}")
    a("s_mul_i32 s37, s25, 20480")
    a("s_mul_i32 s38, s24, 10240")
    a("s_add_u32 s37, s37, s38")
    a(f"v_bfe_u32 v{vT}, v{vL15}, 1, 2")
    a(f"v_xor_b32 v{vT}, v{vT}, v{vG}")
    a(f"v_mul_u32_u24 v{vT+1}, 320, v{vL15}")
    a(f"v_lshl_add_u32 v{vT}, v{vT}, 4, v{vT+1}")
    a(f"v_add_u32 v{vRw}, s37, v{vT}")

def srds(a):
    a("s_load_dwordx4 s[56:59], s[0:1], 48")
    a("s_load_dwordx2 s[60:61], s[0:1], 16")
    a("s_load_dwordx2 s[62:63], s[0:1], 0")
    a("s_load_dwordx4 s[64:67], s[0:1], 64")
    a("s_waitcnt lgkmcnt(0)")
    srd(a, 8, 4, 5, WS_H, WS_O-WS_H)
    srd(a, 12, 56, 57, 0, 1536*1280)
    srd(a, 16, 64, 65, 0, 2621440)
    srd(a, 44, 58, 59, 0, 1280)
    srd(a, 48, 62, 63, 0, 2621440)
    srd(a, 52, 60, 61, 0, 640*1280)
    srd(a, 68, 4, 5, WS_O, WS_G-WS_O)

def b1_task(a):
    g=gb; T=g.vT
    a("L_b1_task:")
    a("s_load_dwordx2 s[56:57], s[0:1], 0")
    a("s_load_dwordx4 s[60:63], s[0:1], 32")
    a(f"v_lshrrev_b32 v{T}, 6, v0")
    a(f"v_and_b32 v{g.vLn}, 63, v0")
    a("s_nop 0")
    a(f"v_readfirstlane_b32 s23, v{T}")
    a(f"v_and_b32 v{g.vL31}, 31, v{g.vLn}")
    a(f"v_lshrrev_b32 v{g.vH}, 5, v{g.vLn}")
    a("s_and_b32 s24, s23, 3")
    a("s_lshr_b32 s25, s23, 2")
    a("s_mul_i32 s27, s21, 96")
    a("s_mul_i32 s35, s21, 24")
    a("s_mov_b32 s26, 3072")
    g.lane_setup(a)
    a("s_waitcnt lgkmcnt(0)")
    srd(a, 8, 56, 57, 0, 2621440)
    srd(a, 12, 60, 61, 0, 640*3072)
    srd(a, 16, 4, 5, WS_H, WS_O-WS_H)
    srd(a, 44, 62, 63, 0, 3072)
    a("s_lshl_b32 s37, s40, 5")
    a("s_add_u32 s37, s37, s27")
    a(f"v_add_u32 v{T}, s37, v{g.vL31}")
    a(f"v_lshlrev_b32 v{T}, 1, v{T}")
    a(f"buffer_load_ushort v{g.vBias}, v{T}, s[44:47], 0 offen")
    a("s_cmp_eq_u32 s25, 0")
    a("s_cbranch_scc0 L_b1_j1")
    g.loop(a, 0, False, "b1a")
    a("s_branch L_b1_fin")
    a("L_b1_j1:")
    g.loop(a, 1, False, "b1b")
    a("L_b1_fin:")
    g.finalize(a, True)
    a("s_cmp_eq_u32 s25, 0")
    a("s_cbranch_scc0 L_b1_e1")
    g.epi_ct(a, 0, 3, " sc1")
    a("s_branch L_b1_pub")
    a("L_b1_e1:")
    g.epi_ct(a, 1, 3, " sc1")
    a("L_b1_pub:")
    def off(a):
        a("s_lshl_b32 s36, s20, 4")
        a("s_add_u32 s36, s36, s21")
        a("s_lshl_b32 s36, s36, 7")
        a(f"s_add_u32 s36, s36, {WS_FL+32768}")
    publish(a, "b1", off)

def wait_flags(a, tag, base_sgpr_code, nfl, sel, force_help):
    a("s_cmp_lg_u32 s23, 0")
    a(f"s_cbranch_scc1 L_{tag}_wd")
    a(f"s_mov_b32 s{sel}, 0")
    base_sgpr_code(a)
    a(f"v_and_b32 v{vT}, {nfl-1}, v{vLn}")
    a(f"v_lshl_add_u32 v{vT}, v{vT}, 7, s37")
    a("s_mov_b32 s38, 0")
    a(f"L_{tag}_poll:")
    a(f"global_load_dwordx2 v[{vT+2}:{vT+3}], v{vT}, s[4:5] sc1")
    a("s_waitcnt vmcnt(0)")
    flag_bad(a, vT+2, vT+1, "vcc")
    a("s_nop 3")
    a("s_cmp_eq_u64 vcc, 0")
    a(f"s_cbranch_scc1 L_{tag}_pok")
    a("s_sleep 5")
    a("s_add_u32 s38, s38, 1")
    a(f"s_cmp_lt_u32 s38, {400 if not force_help else 1}")
    a(f"s_cbranch_scc1 L_{tag}_poll")
    a("s_ff1_i32_b64 s39, vcc")
    a(f"s_add_u32 s{sel}, s39, 1")
    a(f"L_{tag}_pok:")
    a(f"v_mov_b32 v{vT}, {L_DEC}")
    a(f"v_mov_b32 v{vT+1}, s{sel}")
    a(f"ds_write_b32 v{vT}, v{vT+1}")
    a(f"L_{tag}_wd:")
    a("s_waitcnt vmcnt(0) lgkmcnt(0)")
    a("s_barrier")
    a(f"v_mov_b32 v{vT}, {L_DEC}")
    a(f"ds_read_b32 v{vT+1}, v{vT}")
    a("s_waitcnt lgkmcnt(0)")
    a(f"v_readfirstlane_b32 s{sel}, v{vT+1}")
    a("s_nop 3")

def mlp_role(a, force_help=False):
    tag="mb"
    a(f"s_setprio {PRIO[0]}")
    if not WITH_B1[0]:
        setup(a); srds(a)
        a("s_branch L_mb_m2go")
    a("s_load_dwordx4 s[56:59], s[0:1], 0")
    a("s_load_dwordx2 s[60:61], s[0:1], 16")
    a("s_load_dwordx2 s[62:63], s[0:1], 32")
    a("s_load_dwordx2 s[64:65], s[0:1], 48")
    a("s_lshl_b32 s37, s3, 13")
    a("v_lshl_add_u32 v4, v0, 4, s37")
    a("s_mov_b32 s38, 0x200000")
    a("s_waitcnt lgkmcnt(0)")
    d=72
    for (lo,size,rounds) in ((56,2621440,2),(58,2457600,2),(62,1966080,1),(64,1966080,1),(60,819200,1)):
        srd(a, 8, lo, lo+1, 0, size)
        for r in range(rounds):
            a(f"buffer_load_dwordx4 {vr(d,4)}, v4, s[8:11], {'0' if r==0 else 's38'} offen")
            d+=4
    if DELAYB[0]:
        a("s_min_u32 s37, s3, 239")
        a("s_lshl_b32 s37, s37, 7")
        a(f"s_add_u32 s37, s37, {WS_FL+65536}")
        a("v_mov_b32 v10, s37")
        a("s_mov_b32 s38, 0")
        a("v_readfirstlane_b32 s39, v0")
        a("s_nop 3")
        a("s_cmp_lg_u32 s39, 0")
        a("s_cbranch_scc1 L_mb_dl2")
        a("L_mb_dl:")
        a("s_sleep 16")
        a("global_load_dwordx2 v[12:13], v10, s[4:5] sc1")
        a("s_waitcnt vmcnt(0)")
        flag_bad(a, 12, 11, "vcc")
        a("s_nop 3")
        a("s_cmp_eq_u64 vcc, 0")
        a("s_cbranch_scc1 L_mb_dl2")
        a("s_add_u32 s38, s38, 1")
        a("s_cmp_lt_u32 s38, 40")
        a("s_cbranch_scc1 L_mb_dl")
        a("L_mb_dl2:")
        a("s_barrier")
    a("s_and_b32 s37, s3, 7")
    a("s_lshr_b32 s38, s3, 3")
    a("s_and_b32 s20, s37, 1")
    a("s_lshl_b32 s20, s20, 3")
    a("s_and_b32 s39, s38, 7")
    a("s_add_u32 s20, s20, s39")
    a("s_lshr_b32 s21, s37, 1")
    a("s_lshl_b32 s21, s21, 2")
    a("s_lshr_b32 s39, s38, 3")
    a("s_add_u32 s21, s21, s39")
    b1_task(a)
    a("L_mb_m2:")
    setup(a)
    srds(a)
    def hb(a):
        a("s_lshr_b32 s37, s20, 1")
        a("s_lshl_b32 s37, s37, 11")
        a(f"s_add_u32 s37, s37, {WS_FL+32768}")
    wait_flags(a, "mbh", hb, 16, 95, force_help)
    a("s_cmp_eq_u32 s95, 0")
    a("s_cbranch_scc1 L_mb_m2go")
    a("s_barrier")
    a("s_lshr_b32 s20, s20, 1")
    a("s_sub_u32 s21, s95, 1")
    a("s_branch L_b1_task")
    a("L_mb_m2go:")
    a(f"s_setprio {PRIO[1]}")
    tl_mid(a,1)
    A0=vAr; B0=vBf
    NS=12
    a("s_cmp_ge_u32 s23, 4")
    a(f"s_cbranch_scc1 L_{tag}_hi")
    for nd,lab in ((3,"lo"),(2,"hi")):
        if lab=="hi": a(f"L_{tag}_hi:")
        npst=4+nd
        def iss(slot):
            r=A0+8*slot
            a(f"s_add_u32 s35, s42, {4*16384}")
            a(f"buffer_load_dwordx2 {vr(r,2)}, v{vAo}, s[8:11], s42 offen")
            a(f"buffer_load_dwordx2 {vr(r+2,2)}, v{vAo}, s[8:11], s35 offen")
            a(f"buffer_load_dwordx2 {vr(r+4,2)}, v{vAo}, s[8:11], s42 offen offset:128")
            a(f"buffer_load_dwordx2 {vr(r+6,2)}, v{vAo}, s[8:11], s35 offen offset:128")
            a(f"s_add_u32 s42, s42, {32*16384}")
            for q in range(nd):
                a(f"s_add_u32 m0, s{28+q}, {slot*SG}")
                a("s_nop 0")
                a(f"buffer_load_dwordx4 v{vDm+q}, s[12:15], s43 offen lds")
            a(f"s_add_u32 s43, s43, {128*1280}")
        a("s_mov_b32 s42, 0"); a("s_mov_b32 s43, 0"); a("s_mov_b32 s41, 0")
        for s in range(3): iss(s)
        for r in range(40): a(f"v_mov_b32 v{vAcc+r}, 0")
        a(f"s_waitcnt vmcnt({2*npst})")
        a("s_barrier")
        bfr(a, B0, 0)
        def stg(s):
            a("s_waitcnt lgkmcnt(0)")
            mm(a, A0+8*(s%3), B0, False)
            if s<NS-1:
                a(f"s_waitcnt vmcnt({npst if s+2<NS else 0})")
                a("s_barrier")
                if s+3<NS: iss(s%3)
                bfr(a, B0, (s+1)%3)
        a(f"L_{tag}_lp{lab}:")
        for s in range(3): stg(s)
        a("s_add_u32 s41, s41, 1")
        a("s_cmp_lt_u32 s41, 3")
        a(f"s_cbranch_scc1 L_{tag}_lp{lab}")
        for s in range(9,12): stg(s)
        if lab=="lo": a(f"s_branch L_{tag}_red")
    a(f"L_{tag}_red:")
    reduce_write(a)
    for r in range(2):
        item_addr(a, r)
        a(f"v_lshl_add_u32 v{vT+6}, v{vT+2}, 4, s37")
        a(f"buffer_load_dwordx4 {vr(vAr,4)}, v{vT+6}, s[44:47], 0 offen")
        item_sum(a)
        a("s_waitcnt vmcnt(0)")
        P=vAcc; U=vAr+8
        unpack(a, U, vAr, 4)
        for i in range(8): a(f"v_add_f32 v{P+i}, v{P+i}, v{U+i}")
        rnd(a, P, 8)
        sig_mul(a, P, U, 8)
        for i in range(4): a(f"v_cvt_pk_bf16_f32 v{vKG+4*r+i}, v{P+2*i}, v{P+2*i+1}")
    a(f"L_{tag}_oproj:")
    tl_mid(a,0)
    a("s_barrier")
    for s_ in range(3): wdma(a, s_, s_, 3, 52)
    for s_ in (3,4):
        a(f"s_mov_b32 s34, {s_*128*1280}")
        for q in range(3):
            a(f"buffer_load_dwordx4 {vr(vAr+4*q,4)}, v{vDm+q}, s[52:55], s34 offen")
    def ab(a):
        a("s_lshr_b32 s37, s20, 2")
        a("s_lshl_b32 s37, s37, 12")
        a(f"s_add_u32 s37, s37, {WS_FL}")
    wait_flags(a, "mba", ab, 32, 97, force_help)
    a("s_cmp_eq_u32 s97, 0")
    a(f"s_cbranch_scc1 L_{tag}_go")
    a("s_barrier")
    a("s_sub_u32 s39, s97, 1")
    a("s_lshr_b32 s40, s39, 2")
    a("s_and_b32 s41, s39, 3")
    a("s_lshl_b32 s41, s41, 3")
    a("s_or_b32 s40, s40, s41")
    a("s_lshr_b32 s41, s20, 2")
    a("s_lshl_b32 s41, s41, 5")
    a("s_or_b32 s2, s40, s41")
    a("s_setprio 0")
    a("s_branch L_k2_att")
    a(f"L_{tag}_resume:")
    a("s_setprio 0")
    setup(a)
    srds(a)
    a(f"s_branch L_{tag}_oproj")
    a(f"L_{tag}_go:")
    for s_ in range(5): aload(a, vAr+8*s_, s_, 68)
    bfr(a, vBf, 0)
    a("s_waitcnt vmcnt(16) lgkmcnt(0)")
    mm(a, vAr, vBf, True)
    a("s_barrier")
    wdma(a, 3, 0, 3, 52)
    bfr(a, vBf, 1)
    a("s_waitcnt vmcnt(15) lgkmcnt(0)")
    mm(a, vAr+8, vBf, False)
    a("s_barrier")
    wdma(a, 4, 1, 3, 52)
    bfr(a, vBf, 2)
    a("s_waitcnt vmcnt(14) lgkmcnt(0)")
    mm(a, vAr+16, vBf, False)
    a("s_waitcnt vmcnt(3)")
    a("s_barrier")
    bfr(a, vBf, 0)
    a("s_waitcnt lgkmcnt(0)")
    mm(a, vAr+24, vBf, False)
    a("s_waitcnt vmcnt(0)")
    a("s_barrier")
    bfr(a, vBf, 1)
    item_addr(a, 1)
    a(f"buffer_load_dwordx4 {vr(vAr+4,4)}, v{vT+4}, s[48:51], 0 offen")
    item_addr(a, 0)
    a(f"buffer_load_dwordx4 {vr(vAr,4)}, v{vT+4}, s[48:51], 0 offen")
    a("s_waitcnt lgkmcnt(0)")
    mm(a, vAr+32, vBf, False)
    reduce_write(a)
    for r in range(2):
        if r==1:
            a("s_cmp_ge_u32 s23, 2")
            a(f"s_cbranch_scc1 L_{tag}_done")
            item_addr(a, 1)
        item_sum(a)
        if r==0: a("s_waitcnt vmcnt(0)")
        P=vAcc; U=vAr+8
        unpack(a, U, vKG+4*r, 4)
        for i in range(8): a(f"v_mul_f32 v{P+i}, v{P+i}, v{U+i}")
        rnd(a, P, 8)
        unpack(a, U, vAr+4*r, 4)
        for i in range(8): a(f"v_add_f32 v{P+i}, v{P+i}, v{U+i}")
        for i in range(4): a(f"v_cvt_pk_bf16_f32 v{vBf+4*r+i}, v{P+2*i}, v{P+2*i+1}")
        a(f"buffer_store_dwordx4 {vr(vBf+4*r,4)}, v{vT+4}, s[16:19], 0 offen")
    a(f"L_{tag}_done:")
```
